```python
import torch

def _softmax(x, axis=-1):
    return torch.softmax(x, dim=axis)
def _gelu(x):
    return torch.nn.functional.gelu(x, approximate="tanh")
def _silu(x):
    return torch.nn.functional.silu(x)
def _sigmoid(x):
    return torch.sigmoid(x)
def _layernorm(x, axis=-1, eps=1e-5):
    m = x.mean(dim=axis, keepdim=True)
    v = x.var(dim=axis, keepdim=True, unbiased=False)
    return (x - m) / torch.sqrt(v + eps)
def _scatter_add(tgt, idx, src, axis=0):
    return tgt.clone().index_add_(axis, idx, src)
def _segment_sum(src, seg, n):
    out = torch.zeros((n,) + src.shape[1:], dtype=src.dtype)
    return out.index_add_(0, seg, src)
def _pad(x, pw):
    flat = tuple(v for pair in reversed(pw) for v in pair)
    return torch.nn.functional.pad(x, flat)

kernel_name = 'standalone__gqa_softmax__near_ridge'

def setup_inputs():

    _w = (lambda a: (lambda t: t.to(torch.bfloat16) if t.is_floating_point() else t)(torch.as_tensor(a)))
    B, Hq, Hkv, Sq, Sk, D = 32, 32, 8, 192, 512, 128
    return {
        "q": _w((lambda *s: torch.randn(*s, dtype=torch.bfloat16) * 0.8)(B, Hq, Sq, D)),
        "k": _w((lambda *s: torch.randn(*s, dtype=torch.bfloat16) * 0.8)(B, Hkv, Sk, D)),
        "v": _w((lambda *s: torch.randn(*s, dtype=torch.bfloat16) * 0.05)(B, Hkv, Sk, D)),
    }

def reference(q, k, v):
    B, Hq, Sq, D = q.shape
    Hkv = k.shape[1]
    rep = Hq // Hkv
    k = (lambda x, n, axis: torch.repeat_interleave(x, n, dim=axis))(k, rep, axis=1)
    v = (lambda x, n, axis: torch.repeat_interleave(x, n, dim=axis))(v, rep, axis=1)
    scale = D ** -0.5
    scores = torch.einsum("bhqd,bhkd->bhqk", q, k) * scale
    p = _softmax(scores, axis=-1)
    return torch.einsum("bhqk,bhkd->bhqd", p, v)
```

```python
import re

def rr(p, a, n=1):
    return f"{p}{a}" if n == 1 else f"{p}[{a}:{a+n-1}]"
def rs(p, a, n=1):
    return {f"{p}{a+i}" for i in range(n)}

class Op:
    _id = 0
    def __init__(self, text, kind, reads=(), writes=(), cost=None, earliest=-1, deadline=10**9, target=None,
                 deps=(), need_vm=(), need_lgkm=(), creads=(), after=-1, hard=10**9):
        self.text = text; self.kind = kind
        self.reads = set(reads); self.writes = set(writes); self.creads = set(creads)
        dc = dict(mfma=8, valu=4, trans=8, perm=8, ldsr=4, ldsw=12, dma=8, store=16, salu=0, barrier=8, wait=0, nop=4, vload=8)
        self.cost = dc[kind] if cost is None else cost
        self.after = after; self.hard = hard
        self.earliest = max(earliest, after); self.deadline = min(deadline, hard)
        self.target = target if target is not None else self.earliest
        self.deps = []
        for d in deps:
            self.deps.append(d if isinstance(d, tuple) else (d, 0))
        self.need_vm = list(need_vm)
        self.need_lgkm = list(need_lgkm)
        self.gap = None
        self.id = Op._id; Op._id += 1
    def __repr__(self): return self.text

VM = ('dma', 'store', 'vload')
LG = ('ldsr', 'ldsw')
VAL = ('valu', 'trans', 'perm')

class Stream:
    def __init__(self):
        self.out = []
        self.vm = []
        self.lg = []
        self.cur_gap = -1
    def needs(self, op):
        nv = nl = None
        for i, o in enumerate(self.vm):
            if o in op.need_vm or (o.kind == 'vload' and (o.writes & (op.reads | op.writes))):
                nv = len(self.vm) - 1 - i
        for i, o in enumerate(self.lg):
            if o in op.need_lgkm or (o.writes & (op.reads | op.writes)):
                nl = len(self.lg) - 1 - i
        return nv, nl
    def wait(self, nv, nl, coalesce=8):
        if nl is not None:
            young = sum(1 for o in self.lg if o.gap is not None and o.gap > self.cur_gap - coalesce)
            nl = min(nl, young, 15)
        if nv is not None: nv = min(nv, 63)
        t = "s_waitcnt"
        if nv is not None:
            t += f" vmcnt({nv})"; self.vm = self.vm[len(self.vm) - nv:] if nv else []
        if nl is not None:
            t += f" lgkmcnt({nl})"; self.lg = self.lg[len(self.lg) - nl:] if nl else []
        self.out.append(Op(t, 'wait'))
    def emit(self, op):
        nv, nl = self.needs(op)
        if nv is not None or nl is not None: self.wait(nv, nl)
        op.gap = self.cur_gap
        self.out.append(op)
        if op.kind in VM: self.vm.append(op)
        if op.kind in LG: self.lg.append(op)

def propagate_deadlines(fillers):
    changed = True
    order = sorted(fillers, key=lambda o: -o.id)
    users = {}
    for _ in range(50):
        changed = False
        for o in order:
            for d, mg in o.deps:
                if d.kind == 'mfma' or d.gap is not None: continue
                if d.deadline > o.deadline - mg:
                    d.deadline = o.deadline - mg; changed = True
                if d.target > o.target - mg:
                    d.target = o.target - mg; changed = True
        if not changed: break

def schedule(st, mfmas, fillers, cap=8, lookahead=40, stats=None):
    propagate_deadlines(fillers)
    pend = sorted(fillers, key=lambda o: (o.target, o.id))
    n = len(mfmas)
    def ready(o, g, chosen):
        if o.earliest > g: return False
        for d, mg in o.deps:
            if d.gap is None:
                if mg == 0 and d in chosen:
                    if (d.kind in VAL) and (o.kind not in VAL): return False
                    continue
                return False
            if d.gap + mg > g: return False
        return True
    cyc = 0
    for g in range(-1, n):
        st.cur_gap = g
        if g >= 0:
            st.emit(mfmas[g])
        last = (g == n - 1)
        chosen = []
        shadow_used = False
        nxt = mfmas[g + 1] if g + 1 < n else None
        room = cap if g >= 0 else 0
        window = [o for o in pend if o.target <= g + lookahead or o.deadline <= g]
        def take(o):
            chosen.append(o); pend.remove(o); window.remove(o)
        if last:
            forced_lim = 10**9 + 1
        else:
            forced_lim = g
        nonsalu = lambda: [o for o in window if o.kind != 'salu' and ready(o, g, chosen)]
        forced = [o for o in window if o.deadline <= forced_lim and ready(o, g, chosen)]
        while forced:
            for o in forced:
                take(o); room -= o.cost
            forced = [o for o in window if o.deadline <= forced_lim and ready(o, g, chosen)]
        def take_hard(o):
            if o.gap is not None or o in chosen: return
            assert o.after <= g, ("hard deadline before producer", o.text, o.after, g)
            for d, _ in o.deps: take_hard(d)
            chosen.append(o); pend.remove(o)
            if o in window: window.remove(o)
        for o in [o for o in window if o.hard <= g]:
            if o not in chosen:
                k = len(chosen); take_hard(o); room -= sum(x.cost for x in chosen[k:])
        while room > 0:
            c = nonsalu()
            if not c: break
            pick = None
            first = c[0]
            if room >= 8 and not chosen:
                if first.cost >= 8: pick = first
                else:
                    chosen.append(first)
                    part = [o for o in window if o is not first and o.kind != 'salu' and o.cost == 4 and ready(o, g, chosen)]
                    chosen.pop()
                    if part: pick = first
                    else:
                        big = [o for o in c if o.cost >= 8]
                        pick = big[0] if big else first
            else:
                fit = [o for o in c if o.cost <= room]
                if not fit: break
                pick = fit[0]
            take(pick); room -= pick.cost
            if pick.kind in ('store', 'barrier'):
                fit = [o for o in nonsalu() if o.kind == 'valu']
                if fit: take(fit[0])
        def cls(o): return 0 if o.kind == 'salu' else (1 if o.kind == 'barrier' else (2 if o.kind in VM + LG else 3))
        seq = []
        rest = list(chosen)
        while rest:
            cand = [o for o in rest if all((d not in rest) for d, _ in o.deps)]
            cand.sort(key=lambda o: cls(o))
            seq.append(cand[0]); rest.remove(cand[0])
        nv = nl = None
        def merge(a, b): return b if a is None else (a if b is None else min(a, b))
        for o in seq + ([nxt] if nxt else []):
            a, b = st.needs(o); nv = merge(nv, a); nl = merge(nl, b)
        if nv is not None or nl is not None:
            st.wait(nv, nl); shadow_used = True
        if not shadow_used and not any(o.kind == 'salu' for o in seq):
            s = [o for o in window if o.kind == 'salu' and ready(o, g, [])]
            if s:
                o = s[0]; pend.remove(o); window.remove(o); st.emit(o)
        for o in seq: st.emit(o)
        if last:
            gg = g
            while pend:
                gg += 1; st.cur_gap = gg
                c = [o for o in pend if ready(o, gg, [])]
                for o in c:
                    pend.remove(o); st.emit(o)
                assert gg < n + 10000, pend[:5]
    for o in fillers:
        assert o.after <= o.gap <= o.hard, (o.text, o.after, o.gap, o.hard)
    return st

def fix_hazards(ops):
    out = []
    def dist_back(pred, maxd):
        d = 0
        for o in reversed(out):
            if pred(o): return d
            d += o.states if hasattr(o, 'states') else 1
            if d >= maxd: return None
        return None
    nn = 0
    for op in ops:
        need = 0
        def req(pred, n):
            nonlocal need
            d = dist_back(pred, n)
            if d is not None: need = max(need, n - d)
        R = op.reads | op.creads; W = op.writes
        isv = op.kind in VAL
        if op.kind == 'mfma':
            req(lambda o: o.kind in VAL and (o.writes & R), 2)
            req(lambda o: o.kind == 'mfma' and (o.writes & op.reads), 8)
            req(lambda o: o.kind == 'mfma' and (o.writes & op.creads) and o.writes != op.creads, 6)
        if isv or op.kind in VM + LG:
            req(lambda o: o.kind == 'mfma' and (o.writes & (R | W)), 8)
        if isv:
            req(lambda o: o.kind == 'mfma' and (o.creads & W), 3)
            req(lambda o: o.kind == 'trans' and (o.writes & R), 1)
            req(lambda o: o.kind == 'store' and (o.reads & W), 2)
            req(lambda o: o.kind in VAL and any(x[0] == 's' or x == 'vcc' for x in (o.writes & R)), 2)
        if op.kind in ('ldsr', 'vload'):
            req(lambda o: o.kind == 'store' and (o.reads & W), 1)
        if op.kind in VM + LG:
            req(lambda o: o.kind == 'trans' and (o.writes & R), 1)
        if op.kind == 'perm':
            req(lambda o: o.kind in VAL and (o.writes & R), 2)
        if op.kind == 'dma':
            req(lambda o: o.kind == 'salu' and 'm0' in o.writes, 1)
        if op.kind in VM:
            req(lambda o: o.kind in VAL and any(x[0] == 's' for x in (o.writes & R)), 5)
        if op.kind == 'salu':
            req(lambda o: o.kind in VAL and (o.writes & R), 2)
        if need > 0:
            x = Op(f"s_nop {need-1}", 'nop'); x.states = need; out.append(x); nn += 1
        out.append(op)
    return out, nn

def estimate(ops):
    t = 0; pipe_free = 0; prev = None; shadow = False
    for o in ops:
        if o.kind == 'mfma':
            t = max(t, pipe_free); pipe_free = t + 16; t += 8; shadow = True
        elif o.kind in ('salu', 'wait'):
            if shadow: shadow = False
            else: t += 4
        elif o.kind == 'nop':
            k = 4 * o.states
            if shadow: k -= 4; shadow = False
            t += k
        else:
            shadow = False
            c = o.cost
            if o.kind == 'dma': c = 10
            if o.kind in VM + LG and prev is not None and prev.kind in VAL: c += 8
            t += c
        if o.kind not in ('salu', 'wait'): prev = o
    return t


def verify_dataflow(final_ops, all_ops):
    def sim(seq):
        last = {}; res = {}
        for o in seq:
            res[o.id] = {r: last.get(r) for r in (o.reads | o.creads | getattr(o, 'mreads', set()))}
            for w in (o.writes | getattr(o, 'mwrites', set())): last[w] = o.id
        return res
    a = sim(sorted(all_ops, key=lambda o: (o.ref, o.id)))
    b = sim([o for o in final_ops if hasattr(o, 'ref')])
    byid = {o.id: o for o in all_ops}
    bad = 0
    for i in a:
        if a[i] != b[i]:
            for r in a[i]:
                if a[i][r] != b[i][r]:
                    bad += 1
                    if bad < 12: print("DATAFLOW", byid[i].text, "gap", byid[i].gap, "reg", r, "expected", byid.get(a[i][r]), "got", byid.get(b[i][r]))
    return bad

def verify_lds_protocol(final_ops):
    vm = []; lg = []
    state = {}
    lastw = {}; readers = {}
    bad = 0
    allm = []
    for o in final_ops:
        if o.kind == 'wait':
            m = re.search(r"vmcnt\((\d+)\)", o.text)
            if m:
                n = int(m.group(1))
                while len(vm) > n: state[vm.pop(0).id] = 1
            m = re.search(r"lgkmcnt\((\d+)\)", o.text)
            if m:
                n = int(m.group(1))
                while len(lg) > n: state[lg.pop(0).id] = 1
        elif o.kind == 'barrier':
            for k in state:
                if state[k] == 1: state[k] = 2
        if o.kind in VM + LG:
            for r in getattr(o, 'mreads', set()):
                for w in lastw.get(r, []):
                    if w.kind == 'dma':
                        need = 2 if r[0] == 'R' else 1
                        if state[w.id] < need: bad += 1; print("LDS RAW", o.text, o.gap, r)
                readers.setdefault(r, []).append(o)
            for r in getattr(o, 'mwrites', set()):
                if o.kind == 'dma':
                    need = 2 if r[0] == 'R' else 1
                    for x in readers.get(r, []) + [w for w in lastw.get(r, []) if w.kind == 'ldsw']:
                        if state[x.id] < need: bad += 1; print("LDS WAR", o.text, o.gap, r, x.text)
                else:
                    for w in lastw.get(r, []):
                        if w.kind == 'dma' and state[w.id] < 1: bad += 1; print("LDS WAW", o.text, o.gap, r)
                readers[r] = []; lastw[r] = [o]
            state[o.id] = 0
            (vm if o.kind in VM else lg).append(o)
    return bad
```

```python
import sys, math, struct
from sched import *

def f2u(x): return struct.unpack('<I', struct.pack('<f', x))[0]
NAME = "standalone__gqa_softmax__near_ridge"

class Cfg:
    nq = 6
    nslot = 4
    ldfl = "nt"
    stfl = ""
    timing = False
    head_skew = 0
    tail_skew = 0
    vspill = False
    def __init__(self, **kw):
        for k, v in kw.items(): setattr(self, k, v)

def build(cfg):
    nq = cfg.nq; NB = 12 // nq; NS = cfg.nslot
    O = lambda qt, dt: (qt * 8 + dt) * 4
    SB = nq * 32
    S = lambda u: SB + (u % 3) * 8
    M = SB + 24
    MC = lambda qt, M0=M: M0 + qt
    M += nq
    KA = [M, M + 1]; M += 2
    VA = [M + i for i in range(4)]; M += 4
    QA = [M, M + 1]; M += 2
    VOFF = M; M += 1
    OWR = M; ORD = M + 1; OOFF = M + 2; M += 3
    TM = [M, M + 1]; M += 2
    TE = [M, M + 1]; M += 2
    TC = M; M += 1
    M = (M + 3) // 4 * 4
    NRB = min(4, (256 - M) // 4)
    RB = lambda i: M + (i % NRB) * 4
    assert NRB >= 2, M
    Q = lambda qt, s: (qt * 4 + s) * 4
    KB = nq * 16
    KF = lambda buf, kt, s: KB + buf * 32 + (kt * 4 + s) * 4
    VBs = KB + 64
    VF = lambda buf, dt: VBs + buf * 32 + dt * 4
    LB = VBs + 64
    L = lambda qt: LB + qt * 4
    ONES = LB + nq * 4
    assert ONES + 4 <= 256
    KRING = 0; VRING = NS * 8192; QST = 2 * NS * 8192; QSZ = nq * 4096
    LDS = QST + 4 * QSZ
    assert LDS <= 160 * 1024
    OP = 272
    sQ = lambda b: 21 + b
    sKV = lambda b: 24 + b
    sLK, sLQ, sC, sSO, sST, sFL, sLO, sRG = 27, 28, 29, 30, 31, 32, 34, 35

    runs = []
    allq = list(range(nq)); h1 = allq[:nq // 2]; h2 = allq[nq // 2:]
    for b in range(NB):
        hs = cfg.head_skew if b == 0 else 0
        ts = cfg.tail_skew if b == NB - 1 else 0
        for t in range(hs): runs.append((b, t, h1))
        for t in range(hs): runs.append((b, t, h2))
        for t in range(hs, 16 - ts): runs.append((b, t, allq))
        for t in range(16 - ts, 16): runs.append((b, t, h1))
        for t in range(16 - ts, 16): runs.append((b, t, h2))
    units = []
    for r, (b, t, qs) in enumerate(runs):
        for qt in qs: units.append((b, t, qt, r))
    NU = len(units); NR = len(runs)
    mf = []; qk = {}; pv = {}; slot0 = {}
    def mfma(d, a, bb, c):
        dp, da = d; ap, aa = a; bp, ba = bb
        ct = "0" if c is None else rr(dp, da, 4)
        mf.append(Op(f"v_mfma_f32_16x16x32_bf16 {rr(dp,da,4)}, {rr(ap,aa,4)}, {rr(bp,ba,4)}, {ct}", 'mfma',
                     reads=rs(ap, aa, 4) | rs(bp, ba, 4), writes=rs(dp, da, 4), creads=(rs(dp, da, 4) if c else ())))
        return len(mf) - 1
    for i in range(NU + 2):
        slot0[i] = len(mf)
        if i < NU:
            b, t, qt, r = units[i]
            qk[i] = [mfma(('v', S(i) + kt * 4), ('a', KF(r % 2, kt, s)), ('a', Q(qt, s)), (s > 0) or None) for kt in range(2) for s in range(4)]
        if i >= 2:
            u = i - 2; b, t, qt, r = units[u]
            acc = (t > 0) or None
            l = [mfma(('a', L(qt)), ('a', ONES), ('v', S(u)), acc)]
            l += [mfma(('v', O(qt, dt)), ('a', VF(r % 2, dt)), ('v', S(u)), acc) for dt in range(8)]
            pv[u] = l
    NM = len(mf)
    slot0[NU + 2] = NM
    F = []
    REF = [(-1, 0)]
    def add(*a, **k):
        o = Op(*a, **k); o.ref = REF[0]; F.append(o); return o
    for u in range(NU):
        for i in qk[u]: mf[i].ref = (u, 3)
        for i in pv[u]: mf[i].ref = (u, 6)
    run_units = {r: [u for u in range(NU) if units[u][3] == r] for r in range(NR)}
    run_start = {r: slot0[run_units[r][0]] for r in range(NR)}
    run_start[NR] = slot0[NU]; run_start[-1] = -1

    dmas = []
    def dma_pair(srd, sbase, goff, lbase, loff, target, dep, hard):
        d = dict(target=target, dep=dep, hard=hard, srd=srd, sbase=sbase, goff=goff, lbase=lbase, loff=loff, ops=[])
        fl = (" " + cfg.ldfl) if cfg.ldfl else ""
        for h in range(2):
            d['ops'].append(Op(f"buffer_load_dwordx4 v{VOFF}, s[{srd}:{srd+3}], s{sSO} offen" + (" offset:128" if h else "") + fl + " lds", 'dma',
                               reads={f"v{VOFF}", f"s{sSO}", "m0"}))
        for h in range(2):
            if lbase == sLK: d['ops'][h].mwrites = {f"R{loff}_{h}"}
            else: d['ops'][h].mwrites = {f"P{(loff + h * 1024 + 256 * x) // 256}" for x in range(4)}
        dmas.append(d); return d

    bar = {}
    for r in range(-1, NR - 1):
        g = run_start[r] if r != 0 else slot0[run_units[0][len(run_units[0]) // 2]]
        bar[r] = add("s_barrier", 'barrier', earliest=g, target=g - 3, deadline=g + 2)
    seq = lambda b, t: b * 16 + t
    first_run = {}; last_run = {}
    for r, (b, t, qs) in enumerate(runs):
        first_run.setdefault(seq(b, t), r); last_run[seq(b, t)] = r
    kd = {}; vd = {}
    pro = []
    for sq in range(NB * 16):
        b, t = divmod(sq, 16)
        for (name, srd, ring, tab) in (('K', 8, KRING, kd), ('V', 12, VRING, vd)):
            if sq < NS:
                tab[sq] = dma_pair(srd, sKV(b), t * 8192, sLK, ring + (sq % NS) * 8192, -1, None, -1)
            else:
                fr = last_run[sq - NS] + (1 if (name == 'V' and (cfg.vspill or len(runs[last_run[sq - NS] - 1][2]) < 5)) else 0)
                need = first_run[sq] - 1
                assert fr < need, (sq, fr, need)
                g0 = bar[fr].earliest; span = run_start[fr + 1] - g0
                tab[sq] = dma_pair(srd, sKV(b), t * 8192, sLK, ring + (sq % NS) * 8192,
                                   g0 + (span * (1 if name == 'K' else 3)) // 5, bar[fr], bar[need].earliest - 1)
                tab[sq]['free_bar'] = fr
            bar[first_run[sq] - 1].need_vm += tab[sq]['ops']
            tab[sq]['ref'] = (run_units[first_run[sq]][0], 0)
    qd = {}
    for b in range(NB):
        for qt in range(nq):
            for rg in range(2):
                if b == 0: tg = -1; hd = -1
                else:
                    lo = run_start[first_run[seq(b - 1, 4)]]; hi = run_start[first_run[seq(b - 1, 13)]]
                    tg = lo + (hi - lo) * (qt * 2 + rg) // (2 * nq) + 7; hd = hi + 40
                qd[b, qt, rg] = dma_pair(4, sQ(b), qt * 4096 + rg * 2048, sLQ, qt * 4096 + rg * 2048, tg, None, hd)
                qd[b, qt, rg]['ref'] = ((run_units[first_run[seq(b - 1, 8)]][0] if b else -1), 0)
    order = [kd[0], vd[0]] + [qd[0, qt, rg] for qt in range(nq) for rg in range(2)]
    for sq in range(1, NS): order += [kd[sq], vd[sq]]
    rest = sorted([d for d in dmas if d['target'] >= 0], key=lambda d: d['target'])
    prev = None
    for d in order + rest:
        tg = d['target']; hd = d['hard']
        REF[0] = d['ref'] + (len(F), 0)
        d['ops'][0].ref = d['ref'] + (len(F), 1); d['ops'][1].ref = d['ref'] + (len(F), 3); ref2 = d['ref'] + (len(F), 2)
        deps = [prev] if prev else []
        a = add(f"s_add_u32 s{sSO}, s{d['sbase']}, {d['goff']}", 'salu', reads={f"s{d['sbase']}"}, writes={f"s{sSO}"}, deps=deps, target=tg - 3, hard=hd)
        m = add(f"s_add_u32 m0, s{d['lbase']}, {d['loff']}", 'salu', writes={"m0"}, deps=deps, target=tg - 2, hard=hd)
        o0, o1 = d['ops']
        o0.deps = [(a, 1), (m, 1)] + ([(d['dep'], 0)] if d['dep'] else []); o0.target = tg; o0.earliest = tg - 8; o0.hard = hd; o0.deadline = min(hd, tg + 30)
        m2 = add(f"s_add_u32 m0, s{d['lbase']}, {d['loff'] + 1024 - 128}", 'salu', writes={"m0"}, deps=[o0], target=tg + 1, hard=hd)
        m2.ref = ref2
        o1.deps = [(m2, 1)]; o1.target = tg + (2 if tg >= 0 else 0); o1.earliest = tg - 8; o1.hard = hd; o1.deadline = min(hd, tg + 32)
        F.extend([o0, o1]); prev = o1
    last_pro_dma = order[-1]['ops'][1]
    bar[-1].deps.append((last_pro_dma, 0))

    LAT = 7
    for r in range(NR):
        b, t, qs = runs[r]; sq = seq(b, t); sl = sq % NS
        u0 = run_units[r][0]
        pb = bar[r - 1]; g0 = pb.earliest + 1
        kfree = qk[run_units[r - 2][-1]] if r >= 2 else None
        vfree = pv[run_units[r - 2][-1]] if r >= 2 else None
        vstart = max(g0, (vfree[1] if vfree else -1))
        spill = cfg.vspill or (r >= 1 and len(runs[r - 1][2]) < 5) or r == 0
        kend = min(run_start[r] - LAT, vstart if not spill else 10**9)
        kend = max(kend, g0)
        kops = []
        REF[0] = (u0, 2)
        for kt in range(2):
            for s in range(4):
                i = kt * 4 + s
                o = add(f"ds_read_b128 {rr('a', KF(r % 2, kt, s), 4)}, v{KA[s % 2]} offset:{KRING + sl * 8192 + kt * 4096 + (s // 2) * 1024}", 'ldsr',
                        reads={f"v{KA[s%2]}"}, writes=rs('a', KF(r % 2, kt, s), 4), deps=[pb],
                        after=(kfree[i] if kfree else -1), target=g0 + (kend - g0) * i // 8, deadline=qk[u0][i] - LAT, hard=qk[u0][i] - 1)
                kops.append(o); o.mreads = {f"R{KRING + sl * 8192}_{s // 2}"}
        vend = (pv[u0][1] - LAT) if spill else (run_start[r] - 4)
        vend = max(vend, vstart)
        vops = []
        for dt in range(8):
            for h in range(2):
                i = dt * 2 + h
                o = add(f"ds_read_b64_tr_b16 {rr('a', VF(r % 2, dt) + 2 * h, 2)}, v{VA[dt % 4]} offset:{sl * 8192 + h * 4096 + (dt // 4) * 1024}", 'ldsr',
                        reads={f"v{VA[dt%4]}"}, writes=rs('a', VF(r % 2, dt) + 2 * h, 2), deps=[pb],
                        after=(vfree[1 + dt] if vfree else -1), target=vstart + (vend - vstart) * i // 16, deadline=pv[u0][1 + dt] - LAT, hard=pv[u0][1 + dt] - 1)
                vops.append(o); o.mreads = {f"R{VRING + sl * 8192}_{dt // 4}"}
        if last_run[sq] == r and sq + NS < NB * 16:
            fb = bar[kd[sq + NS]['free_bar']]; fb.deps += [(o, 3) for o in kops]; fb.need_lgkm += kops
            fb = bar[vd[sq + NS]['free_bar']]; fb.deps += [(o, 3) for o in vops]; fb.need_lgkm += vops
    for r in range(0, NR - 1): bar[r].deps.append((bar[r - 1], 0))

    firstu = {}; lastu = {}
    for u, (b, t, qt, r) in enumerate(units):
        firstu.setdefault((b, qt), u); lastu[b, qt] = u
    qread = {}
    for b in range(NB):
        for qt in range(nq):
            u = firstu[b, qt]
            REF[0] = (lastu[b - 1, qt], 4) if b else (-1, 1)
            for s in range(4):
                aft = qk[lastu[b - 1, qt]][4 + s] if b else -1
                dl = qk[u][s] - LAT
                qread[b, qt, s] = add(f"ds_read_b128 {rr('a', Q(qt, s), 4)}, v{QA[s % 2]} offset:{qt * 4096 + (s // 2) * 1024}", 'ldsr',
                    reads={f"v{QA[s%2]}"}, writes=rs('a', Q(qt, s), 4), need_vm=qd[b, qt, 0]['ops'] + qd[b, qt, 1]['ops'],
                    deps=[qd[b, qt, 1]['ops'][1]] + ([bar[-1]] if b == 0 else []),
                    after=aft, earliest=(dl - 6 if b == 0 else aft), target=(dl - 4 if b == 0 else aft + 2), deadline=dl, hard=qk[u][s] - 1)
                qread[b, qt, s].mreads = {f"P{(qt * 4096 + rg * 2048 + (s // 2) * 1024) // 256 + x}" for rg in range(2) for x in range(4)}

    lastf = {}
    for u, (b, t, qt, r) in enumerate(units):
        sb = S(u); st0 = slot0[u + 1]; hard = pv[u][0] - 1
        mdep = []
        REF[0] = (u, 5)
        if u == firstu[b, qt]:
            e0 = qk[u][7] + 4; a0 = qk[u][7]
            t0, t1 = TM
            ch = []
            def chain(text, kind, reads, writes, mg=0, extra=()):
                o = add(text, kind, reads=reads, writes=writes, deps=([(ch[-1], mg)] if ch else list(extra)) + ([] if not ch else list(extra)), after=a0, earliest=e0, target=e0 - 6 + len(ch) // 2, hard=hard)
                ch.append(o)
            v = lambda x: f"v{x}"
            chain(f"v_max3_f32 v{t0}, v{sb}, v{sb+1}, v{sb+2}", 'valu', {v(sb), v(sb+1), v(sb+2)}, {v(t0)}, extra=([lastf['max']] if 'max' in lastf else []))
            chain(f"v_max3_f32 v{t1}, v{sb+3}, v{sb+4}, v{sb+5}", 'valu', {v(sb+3), v(sb+4), v(sb+5)}, {v(t1)})
            chain(f"v_max3_f32 v{t0}, v{t0}, v{sb+6}, v{sb+7}", 'valu', {v(t0), v(sb+6), v(sb+7)}, {v(t0)})
            chain(f"v_max_f32 v{t0}, v{t0}, v{t1}", 'valu', {v(t0), v(t1)}, {v(t0)})
            chain(f"v_mov_b32 v{t1}, v{t0}", 'valu', {v(t0)}, {v(t1)})
            chain(f"v_permlane32_swap_b32 v{t0}, v{t1}", 'perm', {v(t0), v(t1)}, {v(t0), v(t1)}, mg=2)
            chain(f"v_max_f32 v{t0}, v{t0}, v{t1}", 'valu', {v(t0), v(t1)}, {v(t0)}, mg=1)
            chain(f"v_mov_b32 v{t1}, v{t0}", 'valu', {v(t0)}, {v(t1)})
            chain(f"v_permlane16_swap_b32 v{t0}, v{t1}", 'perm', {v(t0), v(t1)}, {v(t0), v(t1)}, mg=2)
            chain(f"v_max_f32 v{t0}, v{t0}, v{t1}", 'valu', {v(t0), v(t1)}, {v(t0)}, mg=1)
            chain(f"v_mul_f32 v{MC(qt)}, s{sC+0}, v{t0}".replace(f"s{sC}", f"s{sC}"), 'valu', {v(t0)}, {v(MC(qt))}, extra=lastf.get(qt, []))
            mdep = [ch[-1]]; lastf['max'] = ch[-1]
        fs = []; es = []
        for k in range(8):
            a0 = qk[u][3 if k < 4 else 7]
            f = add(f"v_fma_f32 v{sb+k}, v{sb+k}, s{sC}, -v{MC(qt)}", 'valu', reads={f"v{sb+k}", f"v{MC(qt)}"}, writes={f"v{sb+k}"},
                    deps=mdep, after=a0, earliest=a0 + 4, target=st0 + 2 * k - 2, hard=hard)
            e = add(f"v_exp_f32 v{sb+k}, v{sb+k}", 'trans', reads={f"v{sb+k}"}, writes={f"v{sb+k}"}, deps=[f], after=a0, target=st0 + 2 * k, hard=hard,
                    deadline=hard - 2 - (7 - k))
            fs.append(f); es.append(e)
        lastf[qt] = fs
        pc = None
        for j in range(4):
            c = add(f"v_cvt_pk_bf16_f32 v{sb+j}, v{sb+2*j}, v{sb+2*j+1}", 'valu', reads={f"v{sb+2*j}", f"v{sb+2*j+1}"}, writes={f"v{sb+j}"},
                    deps=[(es[2 * j], 1), (es[2 * j + 1], 1)] + ([pc] if pc else []), after=qk[u][3], target=st0 + 4 * j + 4, deadline=hard - 1, hard=hard)
            pc = c

    eorder = sorted([(lastu[k], k) for k in lastu])
    prev_dsr = {}; prev_st = {}; prev_last_st = None; prev_mul = {}; prev_chk = None
    rbc = 0
    for n_e, (u, (b, qt)) in enumerate(eorder):
        nxt = pv[firstu[b + 1, qt]] if b + 1 < NB else None
        te = TE[n_e % 2]; ob = (n_e % 2) * 16 * OP
        base = pv[u][0]
        REF[0] = (u + 2, 7)
        oreg = {f"P{x}" for x in range(ob // 256, (ob + 16 * OP + 255) // 256)}
        span = (nxt[0] - base - 12) if nxt else 17
        span = min(span, 17 * 2)
        hd = lambda i: (nxt[i] - 1) if nxt else 10**9
        rd = add(f"v_accvgpr_read_b32 v{te}, a{L(qt)}", 'valu', reads={f"a{L(qt)}"}, writes={f"v{te}"}, after=base, earliest=base + 4, target=base + 2, hard=hd(0),
                 deps=prev_mul.get(n_e % 2, []))
        c1 = add(f"v_subrev_u32 v{TC}, s{sLO}, v{te}", 'valu', reads={f"v{te}"}, writes={f"v{TC}"}, deps=[rd] + ([prev_chk] if prev_chk else []), target=base + 3, hard=hd(1))
        c2 = add(f"v_cmp_lt_u32 vcc, s{sRG}, v{TC}", 'valu', reads={f"v{TC}"}, writes={"vcc"}, deps=[c1], target=base + 4, hard=hd(1))
        c3 = add(f"s_or_b64 s[{sFL}:{sFL+1}], s[{sFL}:{sFL+1}], vcc", 'salu', reads={"vcc"}, writes={f"s{sFL}"}, deps=[(c2, 2)], target=base + 6, hard=hd(1))
        prev_chk = c3
        rc = add(f"v_rcp_f32 v{te}, v{te}", 'trans', reads={f"v{te}"}, writes={f"v{te}"}, deps=[c1], target=base + 4, hard=hd(1))
        dsw = []; muls = []
        for dt in range(8):
            o = O(qt, dt); a0 = pv[u][1 + dt]; tg = base + 6 + span * dt // 8
            ms = [add(f"v_mul_f32 v{o+i}, v{o+i}, v{te}", 'valu', reads={f"v{o+i}", f"v{te}"}, writes={f"v{o+i}"}, deps=[(rc, 1)], after=a0, earliest=a0 + 4, target=tg, hard=hd(1 + dt)) for i in range(4)]
            muls += ms
            x0 = add(f"v_cvt_pk_bf16_f32 v{o}, v{o}, v{o+1}", 'valu', reads={f"v{o}", f"v{o+1}"}, writes={f"v{o}"}, deps=ms[:2], target=tg + 1, hard=hd(1 + dt))
            x1 = add(f"v_cvt_pk_bf16_f32 v{o+1}, v{o+2}, v{o+3}", 'valu', reads={f"v{o+2}", f"v{o+3}"}, writes={f"v{o+1}"}, deps=ms[2:] + [x0], target=tg + 1, hard=hd(1 + dt))
            qdeps = [qread[b + 1, q2, 3] for q2 in range(min(3, nq)) if (b + 1, q2, 3) in qread and (q2 * 4096 < ob + 16 * OP and (q2 + 1) * 4096 > ob)]
            qdeps = [qread[b + 1, q2, s] for q2 in range(min(3, nq)) for s in range(4) if (b + 1, q2, s) in qread and (q2 * 4096 < ob + 16 * OP and (q2 + 1) * 4096 > ob)]
            w = add(f"ds_write_b64 v{OWR}, v[{o}:{o+1}] offset:{ob + dt * 32}", 'ldsw', reads={f"v{OWR}", f"v{o}", f"v{o+1}"}, deps=[(x0, 1), (x1, 1)] + prev_dsr.get(n_e % 2, []) + qdeps,
                    target=tg + 2, deadline=hd(1 + dt) - 2, hard=hd(1 + dt))
            dsw.append(w); w.mwrites = oreg | {f"XO{n_e % 2}_{dt}"}
        prev_mul[n_e % 2] = muls
        tg = base + 8 + span
        sa = add(f"s_add_u32 s{sST}, s{sQ(b)}, {qt * 4096}", 'salu', writes={f"s{sST}"}, deps=([prev_last_st] if prev_last_st else []), target=tg)
        dsr = []
        fl = (" " + cfg.stfl) if cfg.stfl else ""
        for i in range(4):
            rb = RB(rbc); key = rbc % NRB; rbc += 1
            x = add(f"ds_read_b128 {rr('v', rb, 4)}, v{ORD} offset:{ob + i * 4 * OP}", 'ldsr', reads={f"v{ORD}"}, writes=rs('v', rb, 4),
                    deps=dsw + ([(prev_st[key], 1)] if key in prev_st else []), target=tg + i, deadline=tg + i + 20)
            y = add(f"buffer_store_dwordx4 {rr('v', rb, 4)}, v{OOFF}, s[16:19], s{sST} offen offset:{i * 1024}{fl}", 'store', reads=rs('v', rb, 4) | {f"v{OOFF}", f"s{sST}"},
                    deps=[(x, LAT), (sa, 1)] + ([prev_last_st] if prev_last_st else []), target=tg + i + LAT, deadline=tg + i + LAT + 20)
            prev_st[key] = y; prev_last_st = y; dsr.append(x); x.mreads = oreg | {f"XO{n_e % 2}_{dt}" for dt in range(8)}
        prev_dsr[n_e % 2] = dsr
        if b + 2 < NB:
            for q2 in range(min(3, nq)):
                for rg in range(2):
                    o0 = qd[b + 2, q2, rg]['ops'][0]; o0.deps += [(x, 0) for x in dsr]; o0.need_lgkm += dsr

    st = Stream()
    schedule(st, mf, F)
    ops, nn = fix_hazards(st.out)
    est = estimate(ops)
    nb1 = verify_dataflow(ops, mf + F); nb2 = verify_lds_protocol(ops)
    assert nb1 == 0 and nb2 == 0, (nb1, nb2)
    body = "\n".join("    " + o.text for o in ops)

    c = math.log2(math.e) / math.sqrt(128.0)
    LO = f2u(2.0 ** -20); HI = f2u(2.0 ** 20)
    p = []
    A = p.append
    A("s_cmp_ge_u32 s2, 256"); A("s_cbranch_scc1 L_exit")
    A("s_load_dwordx4 s[36:39], s[0:1], 0"); A("s_load_dwordx4 s[40:43], s[0:1], 16")
    if cfg.timing:
        A("s_load_dwordx2 s[60:61], s[0:1], 40"); A("s_memtime s[64:65]"); A("s_memrealtime s[66:67]")
    A("v_lshrrev_b32 v1, 6, v0"); A("v_and_b32 v0, 63, v0"); A("v_readfirstlane_b32 s20, v1")
    A("v_lshrrev_b32 v1, 3, v0"); A("v_and_b32 v2, 6, v1"); A("v_and_b32 v3, 7, v0"); A("v_xor_b32 v2, v2, v3")
    A("v_lshlrev_b32 v2, 4, v2"); A(f"v_lshl_add_u32 v{VOFF}, v1, 8, v2")
    A("s_and_b32 s44, s2, 7"); A("s_lshr_b32 s45, s2, 3")
    A(f"s_lshl_b32 s{sLK}, s20, 11")
    A(f"s_mul_i32 s{sLQ}, s20, {QSZ}")
    for b in range(NB):
        if NB == 2:
            A("s_lshr_b32 s46, s45, 1"); A(f"s_add_u32 s46, s46, {b*16}"); A("s_and_b32 s47, s45, 1")
        else:
            A(f"s_add_u32 s47, s45, {b*32}"); A("s_mul_i32 s46, s47, 0x5556"); A("s_lshr_b32 s46, s46, 16"); A("s_mul_i32 s48, s46, 3"); A("s_sub_u32 s47, s47, s48")
        A("s_lshl_b32 s46, s46, 3"); A("s_add_u32 s46, s46, s44")
        A(f"s_lshl_b32 s{sKV(b)}, s46, 17"); A(f"s_add_u32 s{sKV(b)}, s{sKV(b)}, s{sLK}")
        A(f"s_mul_i32 s46, s46, {768*256}"); A(f"s_mul_i32 s47, s47, {4*QSZ}"); A("s_add_u32 s46, s46, s47")
        A(f"s_add_u32 s{sQ(b)}, s46, s{sLQ}")
    A(f"s_add_u32 s{sLQ}, s{sLQ}, {QST}")
    A("s_mov_b32 s6, 0x3000000"); A("s_mov_b32 s7, 0x20000"); A("s_mov_b32 s10, 0x2000000"); A("s_mov_b32 s11, 0x20000")
    A("s_mov_b32 s14, 0x2000000"); A("s_mov_b32 s15, 0x20000"); A("s_mov_b32 s18, 0x3000000"); A("s_mov_b32 s19, 0x20000")
    A(f"s_mov_b32 s{sC}, 0x{f2u(c):08x}"); A(f"s_mov_b32 s{sLO}, 0x{LO:08x}"); A(f"s_mov_b32 s{sRG}, 0x{HI-LO:08x}"); A(f"s_mov_b64 s[{sFL}:{sFL+1}], 0")
    A("v_and_b32 v1, 15, v0"); A("v_lshrrev_b32 v2, 4, v0")
    A("v_lshrrev_b32 v3, 3, v1"); A("v_lshlrev_b32 v3, 11, v3"); A("v_and_b32 v4, 7, v1"); A("v_lshl_add_u32 v3, v4, 7, v3")
    A("v_and_b32 v4, 6, v1"); A("v_xor_b32 v4, v4, v2"); A(f"v_lshl_add_u32 v{KA[0]}, v4, 4, v3"); A(f"v_xor_b32 v{KA[1]}, 64, v{KA[0]}")
    A(f"v_add_u32 v{QA[0]}, s{sLQ}, v{KA[0]}"); A(f"v_add_u32 v{QA[1]}, s{sLQ}, v{KA[1]}")
    A(f"v_mul_u32_u24 v3, {OP}, v1"); A("v_lshl_add_u32 v3, v2, 3, v3"); A(f"v_add_u32 v{OWR}, s{sLQ}, v3")
    A(f"v_mul_u32_u24 v3, {OP}, v2"); A("v_lshl_add_u32 v3, v1, 4, v3"); A(f"v_add_u32 v{ORD}, s{sLQ}, v3")
    A(f"v_lshlrev_b32 v{OOFF}, 4, v0")
    A("v_lshrrev_b32 v1, 2, v0"); A("v_and_b32 v2, 3, v0")
    A("v_lshrrev_b32 v3, 3, v1"); A("v_lshlrev_b32 v3, 11, v3"); A("v_and_b32 v4, 7, v1"); A("v_lshl_add_u32 v3, v4, 7, v3")
    A("v_and_b32 v4, 6, v1"); A("v_lshrrev_b32 v5, 1, v2"); A("v_xor_b32 v4, v4, v5"); A("v_lshl_add_u32 v3, v4, 4, v3")
    A("v_and_b32 v4, 1, v2"); A("v_lshl_add_u32 v3, v4, 3, v3"); A(f"v_add_u32 v{VA[0]}, {VRING}, v3")
    for i in range(1, 4): A(f"v_xor_b32 v{VA[i]}, {32*i}, v{VA[0]}")
    A("v_cmp_eq_u32 vcc, 0, v2"); A("v_mov_b32 v4, 0x3f803f80"); A("s_nop 1"); A("v_cndmask_b32 v4, 0, v4, vcc"); A("s_nop 0")
    for i in range(4): A(f"v_accvgpr_write_b32 a{ONES+i}, v4")
    A("s_waitcnt lgkmcnt(0)")
    A("s_mov_b32 s4, s36"); A("s_mov_b32 s5, s37"); A("s_mov_b32 s8, s38"); A("s_mov_b32 s9, s39")
    A("s_mov_b32 s12, s40"); A("s_mov_b32 s13, s41"); A("s_mov_b32 s16, s42"); A("s_mov_b32 s17, s43")
    pro = "\n".join("    " + x for x in p)
    e = []
    if cfg.timing:
        e += ["s_memtime s[68:69]", "s_memrealtime s[70:71]", "s_waitcnt vmcnt(0) lgkmcnt(0)", "s_memtime s[72:73]", "s_memrealtime s[74:75]", "s_waitcnt lgkmcnt(0)",
              "s_mov_b32 s62, 0x100000", "s_mov_b32 s63, 0x20000", "s_sub_u32 s68, s68, s64", "s_sub_u32 s72, s72, s64",
              "v_mov_b32 v0, s68", "v_mov_b32 v1, s72", "v_mov_b32 v2, s66", "v_mov_b32 v3, s74", "s_lshl_b32 s76, s2, 2", "s_add_u32 s76, s76, s20", "s_lshl_b32 s76, s76, 4",
              "v_mov_b32 v4, s76", "s_mov_b64 exec, 1", "buffer_store_dwordx4 v[0:3], v4, s[60:63], 0 offen"]
    epi = "\n".join("    " + x for x in e)
    txt = f"""; GQA attention forward: B=32 Hq=32 Hkv=8 Sq=192 Sk=512 D=128, bf16 (generated by my own scheduler script)
; @launch grid=(256,1,1) block=(256,1,1) lds={LDS}
.amdgcn_target "amdgcn-amd-amdhsa--gfx950"
.text
.globl {NAME}_kernel
.p2align 8
.type {NAME}_kernel,@function
{NAME}_kernel:
{pro}
{body}
{epi}
L_exit:
    s_endpgm
.section .rodata,"a"
.p2align 6
.amdhsa_kernel {NAME}_kernel
  .amdhsa_next_free_vgpr 512
  .amdhsa_next_free_sgpr 102
  .amdhsa_accum_offset 256
  .amdhsa_group_segment_fixed_size 0
  .amdhsa_kernarg_size 48
  .amdhsa_user_sgpr_count 2
  .amdhsa_user_sgpr_kernarg_segment_ptr 1
  .amdhsa_system_sgpr_workgroup_id_x 1
.end_amdhsa_kernel
"""
    return txt, dict(n=len(ops), nops=nn, est=est, mfma=NM)

if __name__ == "__main__":
    out = sys.argv[1]
    kw = {}
    for a in sys.argv[2:]:
        k, v = a.split("=")
        try: v = int(v)
        except ValueError: pass
        kw[k] = v
    txt, info = build(Cfg(**kw))
    open(out, "w").write(txt)
    print(out, info, len(txt))
```

```python
import sys, math, struct
from sched import *

def f2u(x): return struct.unpack('<I', struct.pack('<f', x))[0]
NAME = "standalone__gqa_softmax__near_ridge"

class Cfg:
    nq = 6
    nslot = 4
    ldfl = "nt"
    stfl = ""
    timing = False
    head_skew = 0
    tail_skew = 0
    cpf = 0
    cpfl = ""
    vspill = False
    def __init__(self, **kw):
        for k, v in kw.items(): setattr(self, k, v)

def build(cfg):
    nq = cfg.nq; NB = 12 // nq; NS = cfg.nslot
    O = lambda qt, dt: (qt * 8 + dt) * 4
    SB = nq * 32
    S = lambda u: SB + (u % 3) * 8
    M = SB + 24
    MC = lambda qt, M0=M: M0 + qt
    M += nq
    KA = [M, M + 1]; M += 2
    VA = [M + i for i in range(4)]; M += 4
    QA = [M, M + 1]; M += 2
    VOFF = M; M += 1
    OWR = M; ORD = M + 1; OOFF = M + 2; M += 3
    TM = [M, M + 1]; M += 2
    TE = [M, M + 1]; M += 2
    TC = M; M += 1
    M = (M + 3) // 4 * 4
    NRB = min(4, (256 - M) // 4)
    RB = lambda i: M + (i % NRB) * 4
    assert NRB >= 2, M
    Q = lambda qt, s: (qt * 4 + s) * 4
    KB = nq * 16
    KF = lambda buf, kt, s: KB + buf * 32 + (kt * 4 + s) * 4
    VBs = KB + 64
    VF = lambda buf, dt: VBs + buf * 32 + dt * 4
    LB = VBs + 64
    L = lambda qt: LB + qt * 4
    ONES = LB + nq * 4
    assert ONES + 4 <= 256
    KRING = 0; VRING = NS * 8192; QST = 2 * NS * 8192; QSZ = nq * 4096
    LDS = QST + 4 * QSZ
    assert LDS <= 160 * 1024
    OP = 272
    sQ = lambda b: 21 + b
    sKV = lambda b: 24 + b
    sLK, sLQ, sC, sSO, sST, sFL, sLO, sRG = 27, 28, 29, 30, 31, 32, 34, 35

    runs = []
    allq = list(range(nq)); h1 = allq[:nq // 2]; h2 = allq[nq // 2:]
    for b in range(NB):
        hs = cfg.head_skew if b == 0 else 0
        ts = cfg.tail_skew if b == NB - 1 else 0
        for t in range(hs): runs.append((b, t, h1))
        for t in range(hs): runs.append((b, t, h2))
        for t in range(hs, 16 - ts): runs.append((b, t, allq))
        for t in range(16 - ts, 16): runs.append((b, t, h1))
        for t in range(16 - ts, 16): runs.append((b, t, h2))
    units = []
    for r, (b, t, qs) in enumerate(runs):
        for qt in qs: units.append((b, t, qt, r))
    NU = len(units); NR = len(runs)
    mf = []; qk = {}; pv = {}; slot0 = {}
    def mfma(d, a, bb, c):
        dp, da = d; ap, aa = a; bp, ba = bb
        ct = "0" if c is None else rr(dp, da, 4)
        mf.append(Op(f"v_mfma_f32_16x16x32_bf16 {rr(dp,da,4)}, {rr(ap,aa,4)}, {rr(bp,ba,4)}, {ct}", 'mfma',
                     reads=rs(ap, aa, 4) | rs(bp, ba, 4), writes=rs(dp, da, 4), creads=(rs(dp, da, 4) if c else ())))
        return len(mf) - 1
    for i in range(NU + 2):
        slot0[i] = len(mf)
        if i < NU:
            b, t, qt, r = units[i]
            qk[i] = [mfma(('v', S(i) + kt * 4), ('a', KF(r % 2, kt, s)), ('a', Q(qt, s)), (s > 0) or None) for kt in range(2) for s in range(4)]
        if i >= 2:
            u = i - 2; b, t, qt, r = units[u]
            acc = (t > 0) or None
            l = [mfma(('a', L(qt)), ('a', ONES), ('v', S(u)), acc)]
            l += [mfma(('v', O(qt, dt)), ('a', VF(r % 2, dt)), ('v', S(u)), acc) for dt in range(8)]
            pv[u] = l
    NM = len(mf)
    slot0[NU + 2] = NM
    F = []
    REF = [(-1, 0)]
    def add(*a, **k):
        o = Op(*a, **k); o.ref = REF[0]; F.append(o); return o
    for u in range(NU):
        for i in qk[u]: mf[i].ref = (u, 3)
        for i in pv[u]: mf[i].ref = (u, 6)
    run_units = {r: [u for u in range(NU) if units[u][3] == r] for r in range(NR)}
    run_start = {r: slot0[run_units[r][0]] for r in range(NR)}
    run_start[NR] = slot0[NU]; run_start[-1] = -1

    dmas = []
    def dma_pair(srd, sbase, goff, lbase, loff, target, dep, hard):
        d = dict(target=target, dep=dep, hard=hard, srd=srd, sbase=sbase, goff=goff, lbase=lbase, loff=loff, ops=[])
        fl = (" " + cfg.ldfl) if cfg.ldfl else ""
        for h in range(2):
            d['ops'].append(Op(f"buffer_load_dwordx4 v{VOFF}, s[{srd}:{srd+3}], s{sSO} offen" + (" offset:128" if h else "") + fl + " lds", 'dma',
                               reads={f"v{VOFF}", f"s{sSO}", "m0"}))
        for h in range(2):
            if lbase == sLK: d['ops'][h].mwrites = {f"R{loff}_{h}"}
            else: d['ops'][h].mwrites = {f"P{(loff + h * 1024 + 256 * x) // 256}" for x in range(4)}
        dmas.append(d); return d

    bar = {}
    for r in range(-1, NR - 1):
        g = run_start[r] if r != 0 else slot0[run_units[0][len(run_units[0]) // 2]]
        bar[r] = add("s_barrier", 'barrier', earliest=g, target=g - 3, deadline=g + 2)
    seq = lambda b, t: b * 16 + t
    first_run = {}; last_run = {}
    for r, (b, t, qs) in enumerate(runs):
        first_run.setdefault(seq(b, t), r); last_run[seq(b, t)] = r
    kd = {}; vd = {}
    pro = []
    for sq in range(NB * 16):
        b, t = divmod(sq, 16)
        for (name, srd, ring, tab) in (('K', 8, KRING, kd), ('V', 12, VRING, vd)):
            if sq < NS:
                tab[sq] = dma_pair(srd, sKV(b), t * 8192, sLK, ring + (sq % NS) * 8192, -1, None, -1)
            else:
                fr = last_run[sq - NS] + (1 if (name == 'V' and (cfg.vspill or len(runs[last_run[sq - NS] - 1][2]) < 5)) else 0)
                need = first_run[sq] - 1
                assert fr < need, (sq, fr, need)
                g0 = bar[fr].earliest; span = run_start[fr + 1] - g0
                tab[sq] = dma_pair(srd, sKV(b), t * 8192, sLK, ring + (sq % NS) * 8192,
                                   g0 + (span * (1 if name == 'K' else 3)) // 5, bar[fr], bar[need].earliest - 1)
                tab[sq]['free_bar'] = fr
            bar[first_run[sq] - 1].need_vm += tab[sq]['ops']
            tab[sq]['ref'] = (run_units[first_run[sq]][0], 0)
    qd = {}
    for b in range(NB):
        for qt in range(nq):
            for rg in range(2):
                if b == 0: tg = -1; hd = -1
                else:
                    lo = run_start[first_run[seq(b - 1, 4)]]; hi = run_start[first_run[seq(b - 1, 13)]]
                    tg = lo + (hi - lo) * (qt * 2 + rg) // (2 * nq) + 7; hd = hi + 40
                qd[b, qt, rg] = dma_pair(4, sQ(b), qt * 4096 + rg * 2048, sLQ, qt * 4096 + rg * 2048, tg, None, hd)
                qd[b, qt, rg]['ref'] = ((run_units[first_run[seq(b - 1, 8)]][0] if b else -1), 0)
    order = [kd[0], vd[0]] + [qd[0, qt, rg] for qt in range(nq) for rg in range(2)]
    for sq in range(1, NS): order += [kd[sq], vd[sq]]
    rest = sorted([d for d in dmas if d['target'] >= 0], key=lambda d: d['target'])
    prev = None
    for d in order + rest:
        tg = d['target']; hd = d['hard']
        REF[0] = d['ref'] + (len(F), 0)
        d['ops'][0].ref = d['ref'] + (len(F), 1); d['ops'][1].ref = d['ref'] + (len(F), 3); ref2 = d['ref'] + (len(F), 2)
        deps = [prev] if prev else []
        a = add(f"s_add_u32 s{sSO}, s{d['sbase']}, {d['goff']}", 'salu', reads={f"s{d['sbase']}"}, writes={f"s{sSO}"}, deps=deps, target=tg - 3, hard=hd)
        m = add(f"s_add_u32 m0, s{d['lbase']}, {d['loff']}", 'salu', writes={"m0"}, deps=deps, target=tg - 2, hard=hd)
        o0, o1 = d['ops']
        o0.deps = [(a, 1), (m, 1)] + ([(d['dep'], 0)] if d['dep'] else []); o0.target = tg; o0.earliest = tg - 8; o0.hard = hd; o0.deadline = min(hd, tg + 30)
        m2 = add(f"s_add_u32 m0, s{d['lbase']}, {d['loff'] + 1024 - 128}", 'salu', writes={"m0"}, deps=[o0], target=tg + 1, hard=hd)
        m2.ref = ref2
        o1.deps = [(m2, 1)]; o1.target = tg + (2 if tg >= 0 else 0); o1.earliest = tg - 8; o1.hard = hd; o1.deadline = min(hd, tg + 32)
        F.extend([o0, o1]); prev = o1
    last_pro_dma = order[-1]['ops'][1]
    bar[-1].deps.append((last_pro_dma, 0))

    LAT = 7
    for r in range(NR):
        b, t, qs = runs[r]; sq = seq(b, t); sl = sq % NS
        u0 = run_units[r][0]
        pb = bar[r - 1]; g0 = pb.earliest + 1
        kfree = qk[run_units[r - 2][-1]] if r >= 2 else None
        vfree = pv[run_units[r - 2][-1]] if r >= 2 else None
        vstart = max(g0, (vfree[1] if vfree else -1))
        spill = cfg.vspill or (r >= 1 and len(runs[r - 1][2]) < 5) or r == 0
        kend = min(run_start[r] - LAT, vstart if not spill else 10**9)
        kend = max(kend, g0)
        kops = []
        REF[0] = (u0, 2)
        for kt in range(2):
            for s in range(4):
                i = kt * 4 + s
                o = add(f"ds_read_b128 {rr('a', KF(r % 2, kt, s), 4)}, v{KA[s % 2]} offset:{KRING + sl * 8192 + kt * 4096 + (s // 2) * 1024}", 'ldsr',
                        reads={f"v{KA[s%2]}"}, writes=rs('a', KF(r % 2, kt, s), 4), deps=[pb],
                        after=(kfree[i] if kfree else -1), target=g0 + (kend - g0) * i // 8, deadline=qk[u0][i] - LAT, hard=qk[u0][i] - 1)
                kops.append(o); o.mreads = {f"R{KRING + sl * 8192}_{s // 2}"}
        vend = (pv[u0][1] - LAT) if spill else (run_start[r] - 4)
        vend = max(vend, vstart)
        vops = []
        for dt in range(8):
            for h in range(2):
                i = dt * 2 + h
                o = add(f"ds_read_b64_tr_b16 {rr('a', VF(r % 2, dt) + 2 * h, 2)}, v{VA[dt % 4]} offset:{sl * 8192 + h * 4096 + (dt // 4) * 1024}", 'ldsr',
                        reads={f"v{VA[dt%4]}"}, writes=rs('a', VF(r % 2, dt) + 2 * h, 2), deps=[pb],
                        after=(vfree[1 + dt] if vfree else -1), target=vstart + (vend - vstart) * i // 16, deadline=pv[u0][1 + dt] - LAT, hard=pv[u0][1 + dt] - 1)
                vops.append(o); o.mreads = {f"R{VRING + sl * 8192}_{dt // 4}"}
        if last_run[sq] == r and sq + NS < NB * 16:
            fb = bar[kd[sq + NS]['free_bar']]; fb.deps += [(o, 3) for o in kops]; fb.need_lgkm += kops
            fb = bar[vd[sq + NS]['free_bar']]; fb.deps += [(o, 3) for o in vops]; fb.need_lgkm += vops
    for r in range(0, NR - 1): bar[r].deps.append((bar[r - 1], 0))

    firstu = {}; lastu = {}
    for u, (b, t, qt, r) in enumerate(units):
        firstu.setdefault((b, qt), u); lastu[b, qt] = u
    qread = {}
    for b in range(NB):
        for qt in range(nq):
            u = firstu[b, qt]
            REF[0] = (lastu[b - 1, qt], 4) if b else (-1, 1)
            for s in range(4):
                aft = qk[lastu[b - 1, qt]][4 + s] if b else -1
                dl = qk[u][s] - LAT
                qread[b, qt, s] = add(f"ds_read_b128 {rr('a', Q(qt, s), 4)}, v{QA[s % 2]} offset:{qt * 4096 + (s // 2) * 1024}", 'ldsr',
                    reads={f"v{QA[s%2]}"}, writes=rs('a', Q(qt, s), 4), need_vm=qd[b, qt, 0]['ops'] + qd[b, qt, 1]['ops'],
                    deps=[qd[b, qt, 1]['ops'][1]] + ([bar[-1]] if b == 0 else []),
                    after=aft, earliest=(dl - 6 if b == 0 else aft), target=(dl - 4 if b == 0 else aft + 2), deadline=dl, hard=qk[u][s] - 1)
                qread[b, qt, s].mreads = {f"P{(qt * 4096 + rg * 2048 + (s // 2) * 1024) // 256 + x}" for rg in range(2) for x in range(4)}

    lastf = {}
    for u, (b, t, qt, r) in enumerate(units):
        sb = S(u); st0 = slot0[u + 1]; hard = pv[u][0] - 1
        mdep = []
        REF[0] = (u, 5)
        if u == firstu[b, qt]:
            e0 = qk[u][7] + 4; a0 = qk[u][7]
            t0, t1 = TM
            ch = []
            def chain(text, kind, reads, writes, mg=0, extra=()):
                o = add(text, kind, reads=reads, writes=writes, deps=([(ch[-1], mg)] if ch else list(extra)) + ([] if not ch else list(extra)), after=a0, earliest=e0, target=e0 - 6 + len(ch) // 2, hard=hard)
                ch.append(o)
            v = lambda x: f"v{x}"
            chain(f"v_max3_f32 v{t0}, v{sb}, v{sb+1}, v{sb+2}", 'valu', {v(sb), v(sb+1), v(sb+2)}, {v(t0)}, extra=([lastf['max']] if 'max' in lastf else []))
            chain(f"v_max3_f32 v{t1}, v{sb+3}, v{sb+4}, v{sb+5}", 'valu', {v(sb+3), v(sb+4), v(sb+5)}, {v(t1)})
            chain(f"v_max3_f32 v{t0}, v{t0}, v{sb+6}, v{sb+7}", 'valu', {v(t0), v(sb+6), v(sb+7)}, {v(t0)})
            chain(f"v_max_f32 v{t0}, v{t0}, v{t1}", 'valu', {v(t0), v(t1)}, {v(t0)})
            chain(f"v_mov_b32 v{t1}, v{t0}", 'valu', {v(t0)}, {v(t1)})
            chain(f"v_permlane32_swap_b32 v{t0}, v{t1}", 'perm', {v(t0), v(t1)}, {v(t0), v(t1)}, mg=2)
            chain(f"v_max_f32 v{t0}, v{t0}, v{t1}", 'valu', {v(t0), v(t1)}, {v(t0)}, mg=1)
            chain(f"v_mov_b32 v{t1}, v{t0}", 'valu', {v(t0)}, {v(t1)})
            chain(f"v_permlane16_swap_b32 v{t0}, v{t1}", 'perm', {v(t0), v(t1)}, {v(t0), v(t1)}, mg=2)
            chain(f"v_max_f32 v{t0}, v{t0}, v{t1}", 'valu', {v(t0), v(t1)}, {v(t0)}, mg=1)
            chain(f"v_mul_f32 v{MC(qt)}, s{sC+0}, v{t0}".replace(f"s{sC}", f"s{sC}"), 'valu', {v(t0)}, {v(MC(qt))}, extra=lastf.get(qt, []))
            mdep = [ch[-1]]; lastf['max'] = ch[-1]
        fs = []; es = []
        for k in range(8):
            a0 = qk[u][3 if k < 4 else 7]
            f = add(f"v_fma_f32 v{sb+k}, v{sb+k}, s{sC}, -v{MC(qt)}", 'valu', reads={f"v{sb+k}", f"v{MC(qt)}"}, writes={f"v{sb+k}"},
                    deps=mdep, after=a0, earliest=a0 + 4, target=st0 + 2 * k - 2, hard=hard)
            e = add(f"v_exp_f32 v{sb+k}, v{sb+k}", 'trans', reads={f"v{sb+k}"}, writes={f"v{sb+k}"}, deps=[f], after=a0, target=st0 + 2 * k, hard=hard,
                    deadline=hard - 2 - (7 - k))
            fs.append(f); es.append(e)
        lastf[qt] = fs
        pc = None
        for j in range(4):
            c = add(f"v_cvt_pk_bf16_f32 v{sb+j}, v{sb+2*j}, v{sb+2*j+1}", 'valu', reads={f"v{sb+2*j}", f"v{sb+2*j+1}"}, writes={f"v{sb+j}"},
                    deps=[(es[2 * j], 1), (es[2 * j + 1], 1)] + ([pc] if pc else []), after=qk[u][3], target=st0 + 4 * j + 4, deadline=hard - 1, hard=hard)
            pc = c

    eorder = sorted([(lastu[k], k) for k in lastu])
    prev_dsr = {}; prev_st = {}; prev_last_st = None; prev_mul = {}; prev_chk = None
    rbc = 0
    for n_e, (u, (b, qt)) in enumerate(eorder):
        nxt = pv[firstu[b + 1, qt]] if b + 1 < NB else None
        te = TE[n_e % 2]; ob = (n_e % 2) * 16 * OP
        base = pv[u][0]
        REF[0] = (u + 2, 7)
        oreg = {f"P{x}" for x in range(ob // 256, (ob + 16 * OP + 255) // 256)}
        span = (nxt[0] - base - 12) if nxt else 17
        span = min(span, 17 * 2)
        hd = lambda i: (nxt[i] - 1) if nxt else 10**9
        rd = add(f"v_accvgpr_read_b32 v{te}, a{L(qt)}", 'valu', reads={f"a{L(qt)}"}, writes={f"v{te}"}, after=base, earliest=base + 4, target=base + 2, hard=hd(0),
                 deps=prev_mul.get(n_e % 2, []))
        c1 = add(f"v_subrev_u32 v{TC}, s{sLO}, v{te}", 'valu', reads={f"v{te}"}, writes={f"v{TC}"}, deps=[rd] + ([prev_chk] if prev_chk else []), target=base + 3, hard=hd(1))
        c2 = add(f"v_cmp_lt_u32 vcc, s{sRG}, v{TC}", 'valu', reads={f"v{TC}"}, writes={"vcc"}, deps=[c1], target=base + 4, hard=hd(1))
        c3 = add(f"s_or_b64 s[{sFL}:{sFL+1}], s[{sFL}:{sFL+1}], vcc", 'salu', reads={"vcc"}, writes={f"s{sFL}"}, deps=[(c2, 2)], target=base + 6, hard=hd(1))
        prev_chk = c3
        rc = add(f"v_rcp_f32 v{te}, v{te}", 'trans', reads={f"v{te}"}, writes={f"v{te}"}, deps=[c1], target=base + 4, hard=hd(1))
        dsw = []; muls = []
        for dt in range(8):
            o = O(qt, dt); a0 = pv[u][1 + dt]; tg = base + 6 + span * dt // 8
            ms = [add(f"v_mul_f32 v{o+i}, v{o+i}, v{te}", 'valu', reads={f"v{o+i}", f"v{te}"}, writes={f"v{o+i}"}, deps=[(rc, 1)], after=a0, earliest=a0 + 4, target=tg, hard=hd(1 + dt)) for i in range(4)]
            muls += ms
            x0 = add(f"v_cvt_pk_bf16_f32 v{o}, v{o}, v{o+1}", 'valu', reads={f"v{o}", f"v{o+1}"}, writes={f"v{o}"}, deps=ms[:2], target=tg + 1, hard=hd(1 + dt))
            x1 = add(f"v_cvt_pk_bf16_f32 v{o+1}, v{o+2}, v{o+3}", 'valu', reads={f"v{o+2}", f"v{o+3}"}, writes={f"v{o+1}"}, deps=ms[2:] + [x0], target=tg + 1, hard=hd(1 + dt))
            qdeps = [qread[b + 1, q2, 3] for q2 in range(min(3, nq)) if (b + 1, q2, 3) in qread and (q2 * 4096 < ob + 16 * OP and (q2 + 1) * 4096 > ob)]
            qdeps = [qread[b + 1, q2, s] for q2 in range(min(3, nq)) for s in range(4) if (b + 1, q2, s) in qread and (q2 * 4096 < ob + 16 * OP and (q2 + 1) * 4096 > ob)]
            w = add(f"ds_write_b64 v{OWR}, v[{o}:{o+1}] offset:{ob + dt * 32}", 'ldsw', reads={f"v{OWR}", f"v{o}", f"v{o+1}"}, deps=[(x0, 1), (x1, 1)] + prev_dsr.get(n_e % 2, []) + qdeps,
                    target=tg + 2, deadline=hd(1 + dt) - 2, hard=hd(1 + dt))
            dsw.append(w); w.mwrites = oreg | {f"XO{n_e % 2}_{dt}"}
        prev_mul[n_e % 2] = muls
        tg = base + 8 + span
        sa = add(f"s_add_u32 s{sST}, s{sQ(b)}, {qt * 4096}", 'salu', writes={f"s{sST}"}, deps=([prev_last_st] if prev_last_st else []), target=tg)
        dsr = []
        fl = (" " + cfg.stfl) if cfg.stfl else ""
        for i in range(4):
            rb = RB(rbc); key = rbc % NRB; rbc += 1
            x = add(f"ds_read_b128 {rr('v', rb, 4)}, v{ORD} offset:{ob + i * 4 * OP}", 'ldsr', reads={f"v{ORD}"}, writes=rs('v', rb, 4),
                    deps=dsw + ([(prev_st[key], 1)] if key in prev_st else []), target=tg + i, deadline=tg + i + 20)
            y = add(f"buffer_store_dwordx4 {rr('v', rb, 4)}, v{OOFF}, s[16:19], s{sST} offen offset:{i * 1024}{fl}", 'store', reads=rs('v', rb, 4) | {f"v{OOFF}", f"s{sST}"},
                    deps=[(x, LAT), (sa, 1)] + ([prev_last_st] if prev_last_st else []), target=tg + i + LAT, deadline=tg + i + LAT + 20)
            prev_st[key] = y; prev_last_st = y; dsr.append(x); x.mreads = oreg | {f"XO{n_e % 2}_{dt}" for dt in range(8)}
        prev_dsr[n_e % 2] = dsr
        if b + 2 < NB:
            for q2 in range(min(3, nq)):
                for rg in range(2):
                    o0 = qd[b + 2, q2, rg]['ops'][0]; o0.deps += [(x, 0) for x in dsr]; o0.need_lgkm += dsr

    st = Stream()
    schedule(st, mf, F)
    ops, nn = fix_hazards(st.out)
    est = estimate(ops)
    nb1 = verify_dataflow(ops, mf + F); nb2 = verify_lds_protocol(ops)
    assert nb1 == 0 and nb2 == 0, (nb1, nb2)
    body = "\n".join("    " + o.text for o in ops)

    c = math.log2(math.e) / math.sqrt(128.0)
    LO = f2u(2.0 ** -20); HI = f2u(2.0 ** 20)
    p = []
    A = p.append
    A("s_cmp_ge_u32 s2, 256"); A("s_cbranch_scc1 L_exit")
    A("s_load_dwordx4 s[36:39], s[0:1], 0"); A("s_load_dwordx4 s[40:43], s[0:1], 16")
    if cfg.timing:
        A("s_load_dwordx2 s[60:61], s[0:1], 40"); A("s_memtime s[64:65]"); A("s_memrealtime s[66:67]")
    if cfg.cpf:
        A("s_getpc_b64 s[52:53]"); A("s_mov_b32 s54, CODE_BYTES"); A("s_mov_b32 s55, 0x20000"); A("s_and_b32 s53, s53, 0xffff")
        A("v_lshlrev_b32 v1, 7, v0")
        for i in range(3):
            A(f"buffer_load_dword v{8+i}, v1, s[52:55], 0 offen {cfg.cpfl}"); A("v_add_u32 v1, 0x8000, v1")
    A("v_lshrrev_b32 v1, 6, v0"); A("v_and_b32 v0, 63, v0"); A("v_readfirstlane_b32 s20, v1")
    A("v_lshrrev_b32 v1, 3, v0"); A("v_and_b32 v2, 6, v1"); A("v_and_b32 v3, 7, v0"); A("v_xor_b32 v2, v2, v3")
    A("v_lshlrev_b32 v2, 4, v2"); A(f"v_lshl_add_u32 v{VOFF}, v1, 8, v2")
    A("s_and_b32 s44, s2, 7"); A("s_lshr_b32 s45, s2, 3")
    A(f"s_lshl_b32 s{sLK}, s20, 11")
    A(f"s_mul_i32 s{sLQ}, s20, {QSZ}")
    for b in range(NB):
        if NB == 2:
            A("s_lshr_b32 s46, s45, 1"); A(f"s_add_u32 s46, s46, {b*16}"); A("s_and_b32 s47, s45, 1")
        else:
            A(f"s_add_u32 s47, s45, {b*32}"); A("s_mul_i32 s46, s47, 0x5556"); A("s_lshr_b32 s46, s46, 16"); A("s_mul_i32 s48, s46, 3"); A("s_sub_u32 s47, s47, s48")
        A("s_lshl_b32 s46, s46, 3"); A("s_add_u32 s46, s46, s44")
        A(f"s_lshl_b32 s{sKV(b)}, s46, 17"); A(f"s_add_u32 s{sKV(b)}, s{sKV(b)}, s{sLK}")
        A(f"s_mul_i32 s46, s46, {768*256}"); A(f"s_mul_i32 s47, s47, {4*QSZ}"); A("s_add_u32 s46, s46, s47")
        A(f"s_add_u32 s{sQ(b)}, s46, s{sLQ}")
    A(f"s_add_u32 s{sLQ}, s{sLQ}, {QST}")
    A("s_mov_b32 s6, 0x3000000"); A("s_mov_b32 s7, 0x20000"); A("s_mov_b32 s10, 0x2000000"); A("s_mov_b32 s11, 0x20000")
    A("s_mov_b32 s14, 0x2000000"); A("s_mov_b32 s15, 0x20000"); A("s_mov_b32 s18, 0x3000000"); A("s_mov_b32 s19, 0x20000")
    A(f"s_mov_b32 s{sC}, 0x{f2u(c):08x}"); A(f"s_mov_b32 s{sLO}, 0x{LO:08x}"); A(f"s_mov_b32 s{sRG}, 0x{HI-LO:08x}"); A(f"s_mov_b64 s[{sFL}:{sFL+1}], 0")
    A("v_and_b32 v1, 15, v0"); A("v_lshrrev_b32 v2, 4, v0")
    A("v_lshrrev_b32 v3, 3, v1"); A("v_lshlrev_b32 v3, 11, v3"); A("v_and_b32 v4, 7, v1"); A("v_lshl_add_u32 v3, v4, 7, v3")
    A("v_and_b32 v4, 6, v1"); A("v_xor_b32 v4, v4, v2"); A(f"v_lshl_add_u32 v{KA[0]}, v4, 4, v3"); A(f"v_xor_b32 v{KA[1]}, 64, v{KA[0]}")
    A(f"v_add_u32 v{QA[0]}, s{sLQ}, v{KA[0]}"); A(f"v_add_u32 v{QA[1]}, s{sLQ}, v{KA[1]}")
    A(f"v_mul_u32_u24 v3, {OP}, v1"); A("v_lshl_add_u32 v3, v2, 3, v3"); A(f"v_add_u32 v{OWR}, s{sLQ}, v3")
    A(f"v_mul_u32_u24 v3, {OP}, v2"); A("v_lshl_add_u32 v3, v1, 4, v3"); A(f"v_add_u32 v{ORD}, s{sLQ}, v3")
    A(f"v_lshlrev_b32 v{OOFF}, 4, v0")
    A("v_lshrrev_b32 v1, 2, v0"); A("v_and_b32 v2, 3, v0")
    A("v_lshrrev_b32 v3, 3, v1"); A("v_lshlrev_b32 v3, 11, v3"); A("v_and_b32 v4, 7, v1"); A("v_lshl_add_u32 v3, v4, 7, v3")
    A("v_and_b32 v4, 6, v1"); A("v_lshrrev_b32 v5, 1, v2"); A("v_xor_b32 v4, v4, v5"); A("v_lshl_add_u32 v3, v4, 4, v3")
    A("v_and_b32 v4, 1, v2"); A("v_lshl_add_u32 v3, v4, 3, v3"); A(f"v_add_u32 v{VA[0]}, {VRING}, v3")
    for i in range(1, 4): A(f"v_xor_b32 v{VA[i]}, {32*i}, v{VA[0]}")
    A("v_cmp_eq_u32 vcc, 0, v2"); A("v_mov_b32 v4, 0x3f803f80"); A("s_nop 1"); A("v_cndmask_b32 v4, 0, v4, vcc"); A("s_nop 0")
    for i in range(4): A(f"v_accvgpr_write_b32 a{ONES+i}, v4")
    A("s_waitcnt lgkmcnt(0)")
    A("s_mov_b32 s4, s36"); A("s_mov_b32 s5, s37"); A("s_mov_b32 s8, s38"); A("s_mov_b32 s9, s39")
    A("s_mov_b32 s12, s40"); A("s_mov_b32 s13, s41"); A("s_mov_b32 s16, s42"); A("s_mov_b32 s17, s43")
    pro = "\n".join("    " + x for x in p)
    e = []
    if cfg.timing:
        e += ["s_memtime s[68:69]", "s_memrealtime s[70:71]", "s_waitcnt vmcnt(0) lgkmcnt(0)", "s_memtime s[72:73]", "s_memrealtime s[74:75]", "s_waitcnt lgkmcnt(0)",
              "s_mov_b32 s62, 0x100000", "s_mov_b32 s63, 0x20000", "s_sub_u32 s68, s68, s64", "s_sub_u32 s72, s72, s64",
              "v_mov_b32 v0, s68", "v_mov_b32 v1, s72", "v_mov_b32 v2, s66", "v_mov_b32 v3, s74", "s_lshl_b32 s76, s2, 2", "s_add_u32 s76, s76, s20", "s_lshl_b32 s76, s76, 4",
              "v_mov_b32 v4, s76", "s_mov_b64 exec, 1", "buffer_store_dwordx4 v[0:3], v4, s[60:63], 0 offen"]
    epi = "\n".join("    " + x for x in e)
    txt = f"""; GQA attention forward: B=32 Hq=32 Hkv=8 Sq=192 Sk=512 D=128, bf16 (generated by my own scheduler script)
; @launch grid=(256,1,1) block=(256,1,1) lds={LDS}
.amdgcn_target "amdgcn-amd-amdhsa--gfx950"
.text
.globl {NAME}_kernel
.p2align 8
.type {NAME}_kernel,@function
{NAME}_kernel:
.set CODE_BYTES, L_exit - {NAME}_kernel - 64
{pro}
{body}
{epi}
L_exit:
    s_endpgm
.section .rodata,"a"
.p2align 6
.amdhsa_kernel {NAME}_kernel
  .amdhsa_next_free_vgpr 512
  .amdhsa_next_free_sgpr 102
  .amdhsa_accum_offset 256
  .amdhsa_group_segment_fixed_size 0
  .amdhsa_kernarg_size 48
  .amdhsa_user_sgpr_count 2
  .amdhsa_user_sgpr_kernarg_segment_ptr 1
  .amdhsa_system_sgpr_workgroup_id_x 1
.end_amdhsa_kernel
"""
    return txt, dict(n=len(ops), nops=nn, est=est, mfma=NM)

if __name__ == "__main__":
    out = sys.argv[1]
    kw = {}
    for a in sys.argv[2:]:
        k, v = a.split("=")
        try: v = int(v)
        except ValueError: pass
        kw[k] = v
    txt, info = build(Cfg(**kw))
    open(out, "w").write(txt)
    print(out, info, len(txt))
```

```python
import sys, math, struct
from sched import *

def f2u(x): return struct.unpack('<I', struct.pack('<f', x))[0]
NAME = "standalone__gqa_softmax__near_ridge"

class Cfg:
    nq = 6
    nslot = 4
    ldfl = "nt"
    stfl = ""
    timing = False
    head_skew = 0
    tail_skew = 0
    cpf = 0
    cpfl = ""
    vspill = False
    def __init__(self, **kw):
        for k, v in kw.items(): setattr(self, k, v)

def build(cfg):
    nq = cfg.nq; NB = 12 // nq; NS = cfg.nslot
    O = lambda qt, dt: (qt * 8 + dt) * 4
    SB = nq * 32
    S = lambda u: SB + (u % 3) * 8
    M = SB + 24
    MC = lambda qt, M0=M: M0 + qt
    M += nq
    KA = [M, M + 1]; M += 2
    VA = [M + i for i in range(4)]; M += 4
    QA = [M, M + 1]; M += 2
    VOFF = M; M += 1
    OWR = M; ORD = M + 1; OOFF = M + 2; M += 3
    TM = [M, M + 1]; M += 2
    TE = [M, M + 1]; M += 2
    TC = M; M += 1
    M = (M + 3) // 4 * 4
    NRB = min(4, (256 - M) // 4)
    RB = lambda i: M + (i % NRB) * 4
    assert NRB >= 2, M
    Q = lambda qt, s: (qt * 4 + s) * 4
    KB = nq * 16
    KF = lambda buf, kt, s: KB + buf * 32 + (kt * 4 + s) * 4
    VBs = KB + 64
    VF = lambda buf, dt: VBs + buf * 32 + dt * 4
    LB = VBs + 64
    L = lambda qt: LB + qt * 4
    ONES = LB + nq * 4
    assert ONES + 4 <= 256
    KRING = 0; VRING = NS * 8192; QST = 2 * NS * 8192; QSZ = nq * 4096
    LDS = QST + 4 * QSZ
    assert LDS <= 160 * 1024
    OP = 272
    sQ = lambda b: 21 + b
    sKV = lambda b: 24 + b
    sLK, sLQ, sC, sSO, sST, sFL, sLO, sRG = 27, 28, 29, 30, 31, 32, 34, 35

    runs = []
    allq = list(range(nq)); h1 = allq[:nq // 2]; h2 = allq[nq // 2:]
    for b in range(NB):
        hs = cfg.head_skew if b == 0 else 0
        ts = cfg.tail_skew if b == NB - 1 else 0
        for t in range(hs): runs.append((b, t, h1))
        for t in range(hs): runs.append((b, t, h2))
        for t in range(hs, 16 - ts): runs.append((b, t, allq))
        for t in range(16 - ts, 16): runs.append((b, t, h1))
        for t in range(16 - ts, 16): runs.append((b, t, h2))
    units = []
    for r, (b, t, qs) in enumerate(runs):
        for qt in qs: units.append((b, t, qt, r))
    NU = len(units); NR = len(runs)
    mf = []; qk = {}; pv = {}; slot0 = {}
    def mfma(d, a, bb, c):
        dp, da = d; ap, aa = a; bp, ba = bb
        ct = "0" if c is None else rr(dp, da, 4)
        mf.append(Op(f"v_mfma_f32_16x16x32_bf16 {rr(dp,da,4)}, {rr(ap,aa,4)}, {rr(bp,ba,4)}, {ct}", 'mfma',
                     reads=rs(ap, aa, 4) | rs(bp, ba, 4), writes=rs(dp, da, 4), creads=(rs(dp, da, 4) if c else ())))
        return len(mf) - 1
    for i in range(NU + 2):
        slot0[i] = len(mf)
        if i < NU:
            b, t, qt, r = units[i]
            qk[i] = [mfma(('v', S(i) + kt * 4), ('a', KF(r % 2, kt, s)), ('a', Q(qt, s)), (s > 0) or None) for kt in range(2) for s in range(4)]
        if i >= 2:
            u = i - 2; b, t, qt, r = units[u]
            acc = (t > 0) or None
            l = [mfma(('a', L(qt)), ('a', ONES), ('v', S(u)), acc)]
            l += [mfma(('v', O(qt, dt)), ('a', VF(r % 2, dt)), ('v', S(u)), acc) for dt in range(8)]
            pv[u] = l
    NM = len(mf)
    slot0[NU + 2] = NM
    F = []
    REF = [(-1, 0)]
    def add(*a, **k):
        o = Op(*a, **k); o.ref = REF[0]; F.append(o); return o
    for u in range(NU):
        for i in qk[u]: mf[i].ref = (u, 3)
        for i in pv[u]: mf[i].ref = (u, 6)
    run_units = {r: [u for u in range(NU) if units[u][3] == r] for r in range(NR)}
    run_start = {r: slot0[run_units[r][0]] for r in range(NR)}
    run_start[NR] = slot0[NU]; run_start[-1] = -1

    dmas = []
    def dma_pair(srd, sbase, goff, lbase, loff, target, dep, hard):
        d = dict(target=target, dep=dep, hard=hard, srd=srd, sbase=sbase, goff=goff, lbase=lbase, loff=loff, ops=[])
        fl = (" " + cfg.ldfl) if cfg.ldfl else ""
        for h in range(2):
            d['ops'].append(Op(f"buffer_load_dwordx4 v{VOFF}, s[{srd}:{srd+3}], s{sSO} offen" + (" offset:128" if h else "") + fl + " lds", 'dma',
                               reads={f"v{VOFF}", f"s{sSO}", "m0"}))
        for h in range(2):
            if lbase == sLK: d['ops'][h].mwrites = {f"R{loff}_{h}"}
            else: d['ops'][h].mwrites = {f"P{(loff + h * 1024 + 256 * x) // 256}" for x in range(4)}
        dmas.append(d); return d

    bar = {}
    for r in range(-1, NR - 1):
        g = run_start[r] if r != 0 else slot0[run_units[0][len(run_units[0]) // 2]]
        bar[r] = add("s_barrier", 'barrier', earliest=g, target=g - 3, deadline=g + 2)
    seq = lambda b, t: b * 16 + t
    first_run = {}; last_run = {}
    for r, (b, t, qs) in enumerate(runs):
        first_run.setdefault(seq(b, t), r); last_run[seq(b, t)] = r
    kd = {}; vd = {}
    pro = []
    for sq in range(NB * 16):
        b, t = divmod(sq, 16)
        for (name, srd, ring, tab) in (('K', 8, KRING, kd), ('V', 12, VRING, vd)):
            if sq < NS:
                tab[sq] = dma_pair(srd, sKV(b), t * 8192, sLK, ring + (sq % NS) * 8192, -1, None, -1)
            else:
                fr = last_run[sq - NS] + (1 if (name == 'V' and (cfg.vspill or len(runs[last_run[sq - NS] - 1][2]) < 5)) else 0)
                need = first_run[sq] - 1
                assert fr < need, (sq, fr, need)
                g0 = bar[fr].earliest; span = run_start[fr + 1] - g0
                tab[sq] = dma_pair(srd, sKV(b), t * 8192, sLK, ring + (sq % NS) * 8192,
                                   g0 + (span * (1 if name == 'K' else 3)) // 5, bar[fr], bar[need].earliest - 1)
                tab[sq]['free_bar'] = fr
            bar[first_run[sq] - 1].need_vm += tab[sq]['ops']
            tab[sq]['ref'] = (run_units[first_run[sq]][0], 0)
    qd = {}
    for b in range(NB):
        for qt in range(nq):
            for rg in range(2):
                if b == 0: tg = -1; hd = -1
                else:
                    lo = run_start[first_run[seq(b - 1, 4)]]; hi = run_start[first_run[seq(b - 1, 13)]]
                    tg = lo + (hi - lo) * (qt * 2 + rg) // (2 * nq) + 7; hd = hi + 40
                qd[b, qt, rg] = dma_pair(4, sQ(b), qt * 4096 + rg * 2048, sLQ, qt * 4096 + rg * 2048, tg, None, hd)
                qd[b, qt, rg]['ref'] = ((run_units[first_run[seq(b - 1, 8)]][0] if b else -1), 0)
    order = [kd[0], vd[0]] + [qd[0, qt, rg] for qt in range(nq) for rg in range(2)]
    for sq in range(1, NS): order += [kd[sq], vd[sq]]
    rest = sorted([d for d in dmas if d['target'] >= 0], key=lambda d: d['target'])
    prev = None
    for d in order + rest:
        tg = d['target']; hd = d['hard']
        REF[0] = d['ref'] + (len(F), 0)
        d['ops'][0].ref = d['ref'] + (len(F), 1); d['ops'][1].ref = d['ref'] + (len(F), 3); ref2 = d['ref'] + (len(F), 2)
        deps = [prev] if prev else []
        a = add(f"s_add_u32 s{sSO}, s{d['sbase']}, {d['goff']}", 'salu', reads={f"s{d['sbase']}"}, writes={f"s{sSO}"}, deps=deps, target=tg - 3, hard=hd)
        m = add(f"s_add_u32 m0, s{d['lbase']}, {d['loff']}", 'salu', writes={"m0"}, deps=deps, target=tg - 2, hard=hd)
        o0, o1 = d['ops']
        o0.deps = [(a, 1), (m, 1)] + ([(d['dep'], 0)] if d['dep'] else []); o0.target = tg; o0.earliest = tg - 8; o0.hard = hd; o0.deadline = min(hd, tg + 30)
        m2 = add(f"s_add_u32 m0, s{d['lbase']}, {d['loff'] + 1024 - 128}", 'salu', writes={"m0"}, deps=[o0], target=tg + 1, hard=hd)
        m2.ref = ref2
        o1.deps = [(m2, 1)]; o1.target = tg + (2 if tg >= 0 else 0); o1.earliest = tg - 8; o1.hard = hd; o1.deadline = min(hd, tg + 32)
        F.extend([o0, o1]); prev = o1
    last_pro_dma = order[-1]['ops'][1]
    bar[-1].deps.append((last_pro_dma, 0))

    LAT = 7
    for r in range(NR):
        b, t, qs = runs[r]; sq = seq(b, t); sl = sq % NS
        u0 = run_units[r][0]
        pb = bar[r - 1]; g0 = pb.earliest + 1
        kfree = qk[run_units[r - 2][-1]] if r >= 2 else None
        vfree = pv[run_units[r - 2][-1]] if r >= 2 else None
        vstart = max(g0, (vfree[1] if vfree else -1))
        spill = cfg.vspill or (r >= 1 and len(runs[r - 1][2]) < 5) or r == 0
        kend = min(run_start[r] - LAT, vstart if not spill else 10**9)
        kend = max(kend, g0)
        kops = []
        REF[0] = (u0, 2)
        for kt in range(2):
            for s in range(4):
                i = kt * 4 + s
                o = add(f"ds_read_b128 {rr('a', KF(r % 2, kt, s), 4)}, v{KA[s % 2]} offset:{KRING + sl * 8192 + kt * 4096 + (s // 2) * 1024}", 'ldsr',
                        reads={f"v{KA[s%2]}"}, writes=rs('a', KF(r % 2, kt, s), 4), deps=[pb],
                        after=(kfree[i] if kfree else -1), target=g0 + (kend - g0) * i // 8, deadline=qk[u0][i] - LAT, hard=qk[u0][i] - 1)
                kops.append(o); o.mreads = {f"R{KRING + sl * 8192}_{s // 2}"}
        vend = (pv[u0][1] - LAT) if spill else (run_start[r] - 4)
        vend = max(vend, vstart)
        vops = []
        for dt in range(8):
            for h in range(2):
                i = dt * 2 + h
                o = add(f"ds_read_b64_tr_b16 {rr('a', VF(r % 2, dt) + 2 * h, 2)}, v{VA[dt % 4]} offset:{sl * 8192 + h * 4096 + (dt // 4) * 1024}", 'ldsr',
                        reads={f"v{VA[dt%4]}"}, writes=rs('a', VF(r % 2, dt) + 2 * h, 2), deps=[pb],
                        after=(vfree[1 + dt] if vfree else -1), target=vstart + (vend - vstart) * i // 16, deadline=pv[u0][1 + dt] - LAT, hard=pv[u0][1 + dt] - 1)
                vops.append(o); o.mreads = {f"R{VRING + sl * 8192}_{dt // 4}"}
        if last_run[sq] == r and sq + NS < NB * 16:
            fb = bar[kd[sq + NS]['free_bar']]; fb.deps += [(o, 3) for o in kops]; fb.need_lgkm += kops
            fb = bar[vd[sq + NS]['free_bar']]; fb.deps += [(o, 3) for o in vops]; fb.need_lgkm += vops
    for r in range(0, NR - 1): bar[r].deps.append((bar[r - 1], 0))

    firstu = {}; lastu = {}
    for u, (b, t, qt, r) in enumerate(units):
        firstu.setdefault((b, qt), u); lastu[b, qt] = u
    qread = {}
    for b in range(NB):
        for qt in range(nq):
            u = firstu[b, qt]
            REF[0] = (lastu[b - 1, qt], 4) if b else (-1, 1)
            for s in range(4):
                aft = qk[lastu[b - 1, qt]][4 + s] if b else -1
                dl = qk[u][s] - LAT
                qread[b, qt, s] = add(f"ds_read_b128 {rr('a', Q(qt, s), 4)}, v{QA[s % 2]} offset:{qt * 4096 + (s // 2) * 1024}", 'ldsr',
                    reads={f"v{QA[s%2]}"}, writes=rs('a', Q(qt, s), 4), need_vm=qd[b, qt, 0]['ops'] + qd[b, qt, 1]['ops'],
                    deps=[qd[b, qt, 1]['ops'][1]] + ([bar[-1]] if b == 0 else []),
                    after=aft, earliest=(dl - 6 if b == 0 else aft), target=(dl - 4 if b == 0 else aft + 2), deadline=dl, hard=qk[u][s] - 1)
                qread[b, qt, s].mreads = {f"P{(qt * 4096 + rg * 2048 + (s // 2) * 1024) // 256 + x}" for rg in range(2) for x in range(4)}

    lastf = {}
    for u, (b, t, qt, r) in enumerate(units):
        sb = S(u); st0 = slot0[u + 1]; hard = pv[u][0] - 1
        mdep = []
        REF[0] = (u, 5)
        if u == firstu[b, qt]:
            e0 = qk[u][7] + 4; a0 = qk[u][7]
            t0, t1 = TM
            ch = []
            def chain(text, kind, reads, writes, mg=0, extra=()):
                o = add(text, kind, reads=reads, writes=writes, deps=([(ch[-1], mg)] if ch else list(extra)) + ([] if not ch else list(extra)), after=a0, earliest=e0, target=e0 - 6 + len(ch) // 2, hard=hard)
                ch.append(o)
            v = lambda x: f"v{x}"
            chain(f"v_max3_f32 v{t0}, v{sb}, v{sb+1}, v{sb+2}", 'valu', {v(sb), v(sb+1), v(sb+2)}, {v(t0)}, extra=([lastf['max']] if 'max' in lastf else []))
            chain(f"v_max3_f32 v{t1}, v{sb+3}, v{sb+4}, v{sb+5}", 'valu', {v(sb+3), v(sb+4), v(sb+5)}, {v(t1)})
            chain(f"v_max3_f32 v{t0}, v{t0}, v{sb+6}, v{sb+7}", 'valu', {v(t0), v(sb+6), v(sb+7)}, {v(t0)})
            chain(f"v_max_f32 v{t0}, v{t0}, v{t1}", 'valu', {v(t0), v(t1)}, {v(t0)})
            chain(f"v_mov_b32 v{t1}, v{t0}", 'valu', {v(t0)}, {v(t1)})
            chain(f"v_permlane32_swap_b32 v{t0}, v{t1}", 'perm', {v(t0), v(t1)}, {v(t0), v(t1)}, mg=2)
            chain(f"v_max_f32 v{t0}, v{t0}, v{t1}", 'valu', {v(t0), v(t1)}, {v(t0)}, mg=1)
            chain(f"v_mov_b32 v{t1}, v{t0}", 'valu', {v(t0)}, {v(t1)})
            chain(f"v_permlane16_swap_b32 v{t0}, v{t1}", 'perm', {v(t0), v(t1)}, {v(t0), v(t1)}, mg=2)
            chain(f"v_max_f32 v{t0}, v{t0}, v{t1}", 'valu', {v(t0), v(t1)}, {v(t0)}, mg=1)
            chain(f"v_mul_f32 v{MC(qt)}, s{sC+0}, v{t0}".replace(f"s{sC}", f"s{sC}"), 'valu', {v(t0)}, {v(MC(qt))}, extra=lastf.get(qt, []))
            mdep = [ch[-1]]; lastf['max'] = ch[-1]
        fs = []; es = []
        for k in range(8):
            a0 = qk[u][3 if k < 4 else 7]
            f = add(f"v_fma_f32 v{sb+k}, v{sb+k}, s{sC}, -v{MC(qt)}", 'valu', reads={f"v{sb+k}", f"v{MC(qt)}"}, writes={f"v{sb+k}"},
                    deps=mdep, after=a0, earliest=a0 + 4, target=st0 + 2 * k - 2, hard=hard)
            e = add(f"v_exp_f32 v{sb+k}, v{sb+k}", 'trans', reads={f"v{sb+k}"}, writes={f"v{sb+k}"}, deps=[f], after=a0, target=st0 + 2 * k, hard=hard,
                    deadline=hard - 2 - (7 - k))
            fs.append(f); es.append(e)
        lastf[qt] = fs
        pc = None
        for j in range(4):
            c = add(f"v_cvt_pk_bf16_f32 v{sb+j}, v{sb+2*j}, v{sb+2*j+1}", 'valu', reads={f"v{sb+2*j}", f"v{sb+2*j+1}"}, writes={f"v{sb+j}"},
                    deps=[(es[2 * j], 1), (es[2 * j + 1], 1)] + ([pc] if pc else []), after=qk[u][3], target=st0 + 4 * j + 4, deadline=hard - 1, hard=hard)
            pc = c

    eorder = sorted([(lastu[k], k) for k in lastu])
    prev_dsr = {}; prev_st = {}; prev_last_st = None; prev_mul = {}; prev_chk = None
    rbc = 0
    for n_e, (u, (b, qt)) in enumerate(eorder):
        nxt = pv[firstu[b + 1, qt]] if b + 1 < NB else None
        te = TE[n_e % 2]; ob = (n_e % 2) * 16 * OP
        base = pv[u][0]
        REF[0] = (u + 2, 7)
        oreg = {f"P{x}" for x in range(ob // 256, (ob + 16 * OP + 255) // 256)}
        span = (nxt[0] - base - 12) if nxt else 17
        span = min(span, 17 * 2)
        hd = lambda i: (nxt[i] - 1) if nxt else 10**9
        rd = add(f"v_accvgpr_read_b32 v{te}, a{L(qt)}", 'valu', reads={f"a{L(qt)}"}, writes={f"v{te}"}, after=base, earliest=base + 4, target=base + 2, hard=hd(0),
                 deps=prev_mul.get(n_e % 2, []))
        c1 = add(f"v_subrev_u32 v{TC}, s{sLO}, v{te}", 'valu', reads={f"v{te}"}, writes={f"v{TC}"}, deps=[rd] + ([prev_chk] if prev_chk else []), target=base + 3, hard=hd(1))
        c2 = add(f"v_cmp_lt_u32 vcc, s{sRG}, v{TC}", 'valu', reads={f"v{TC}"}, writes={"vcc"}, deps=[c1], target=base + 4, hard=hd(1))
        c3 = add(f"s_or_b64 s[{sFL}:{sFL+1}], s[{sFL}:{sFL+1}], vcc", 'salu', reads={"vcc"}, writes={f"s{sFL}"}, deps=[(c2, 2)], target=base + 6, hard=hd(1))
        prev_chk = c3
        rc = add(f"v_rcp_f32 v{te}, v{te}", 'trans', reads={f"v{te}"}, writes={f"v{te}"}, deps=[c1], target=base + 4, hard=hd(1))
        dsw = []; muls = []
        for dt in range(8):
            o = O(qt, dt); a0 = pv[u][1 + dt]; tg = base + 6 + span * dt // 8
            ms = [add(f"v_mul_f32 v{o+i}, v{o+i}, v{te}", 'valu', reads={f"v{o+i}", f"v{te}"}, writes={f"v{o+i}"}, deps=[(rc, 1)], after=a0, earliest=a0 + 4, target=tg, hard=hd(1 + dt)) for i in range(4)]
            muls += ms
            x0 = add(f"v_cvt_pk_bf16_f32 v{o}, v{o}, v{o+1}", 'valu', reads={f"v{o}", f"v{o+1}"}, writes={f"v{o}"}, deps=ms[:2], target=tg + 1, hard=hd(1 + dt))
            x1 = add(f"v_cvt_pk_bf16_f32 v{o+1}, v{o+2}, v{o+3}", 'valu', reads={f"v{o+2}", f"v{o+3}"}, writes={f"v{o+1}"}, deps=ms[2:] + [x0], target=tg + 1, hard=hd(1 + dt))
            qdeps = [qread[b + 1, q2, 3] for q2 in range(min(3, nq)) if (b + 1, q2, 3) in qread and (q2 * 4096 < ob + 16 * OP and (q2 + 1) * 4096 > ob)]
            qdeps = [qread[b + 1, q2, s] for q2 in range(min(3, nq)) for s in range(4) if (b + 1, q2, s) in qread and (q2 * 4096 < ob + 16 * OP and (q2 + 1) * 4096 > ob)]
            w = add(f"ds_write_b64 v{OWR}, v[{o}:{o+1}] offset:{ob + dt * 32}", 'ldsw', reads={f"v{OWR}", f"v{o}", f"v{o+1}"}, deps=[(x0, 1), (x1, 1)] + prev_dsr.get(n_e % 2, []) + qdeps,
                    target=tg + 2, deadline=hd(1 + dt) - 2, hard=hd(1 + dt))
            dsw.append(w); w.mwrites = oreg | {f"XO{n_e % 2}_{dt}"}
        prev_mul[n_e % 2] = muls
        tg = base + 8 + span
        sa = add(f"s_add_u32 s{sST}, s{sQ(b)}, {qt * 4096}", 'salu', writes={f"s{sST}"}, deps=([prev_last_st] if prev_last_st else []), target=tg)
        dsr = []
        fl = (" " + cfg.stfl) if cfg.stfl else ""
        for i in range(4):
            rb = RB(rbc); key = rbc % NRB; rbc += 1
            x = add(f"ds_read_b128 {rr('v', rb, 4)}, v{ORD} offset:{ob + i * 4 * OP}", 'ldsr', reads={f"v{ORD}"}, writes=rs('v', rb, 4),
                    deps=dsw + ([(prev_st[key], 1)] if key in prev_st else []), target=tg + i, deadline=tg + i + 20)
            y = add(f"buffer_store_dwordx4 {rr('v', rb, 4)}, v{OOFF}, s[16:19], s{sST} offen offset:{i * 1024}{fl}", 'store', reads=rs('v', rb, 4) | {f"v{OOFF}", f"s{sST}"},
                    deps=[(x, LAT), (sa, 1)] + ([prev_last_st] if prev_last_st else []), target=tg + i + LAT, deadline=tg + i + LAT + 20)
            prev_st[key] = y; prev_last_st = y; dsr.append(x); x.mreads = oreg | {f"XO{n_e % 2}_{dt}" for dt in range(8)}
        prev_dsr[n_e % 2] = dsr
        if b + 2 < NB:
            for q2 in range(min(3, nq)):
                for rg in range(2):
                    o0 = qd[b + 2, q2, rg]['ops'][0]; o0.deps += [(x, 0) for x in dsr]; o0.need_lgkm += dsr

    stamps = []
    if cfg.timing:
        want = [r for r in range(NR) if (r < 4 or r % 2 == 0 or runs[r][1] in (15, 1))][:15 + 8]
        step = 1
        want = want[:22]
        for i, r in enumerate(want):
            REF[0] = (0, 9)
            add(f"s_memtime s[{56 + 2 * i}:{57 + 2 * i}]", 'salu', earliest=run_start[r], target=run_start[r] - 5, deadline=run_start[r] + 1)
            stamps.append(r)
    st = Stream()
    schedule(st, mf, F)
    ops, nn = fix_hazards(st.out)
    est = estimate(ops)
    nb1 = verify_dataflow(ops, mf + F); nb2 = verify_lds_protocol(ops)
    assert nb1 == 0 and nb2 == 0, (nb1, nb2)
    body = "\n".join("    " + o.text for o in ops)

    c = math.log2(math.e) / math.sqrt(128.0)
    LO = f2u(2.0 ** -20); HI = f2u(2.0 ** 20)
    p = []
    A = p.append
    A("s_cmp_ge_u32 s2, 256"); A("s_cbranch_scc1 L_exit")
    A("s_load_dwordx4 s[36:39], s[0:1], 0"); A("s_load_dwordx4 s[40:43], s[0:1], 16")
    if cfg.timing:
        A("s_memtime s[46:47]"); A("s_memrealtime s[48:49]"); A("s_waitcnt lgkmcnt(0)"); A("s_mov_b32 s100, s46"); A("s_mov_b32 s101, s48")
    if cfg.cpf:
        A("s_getpc_b64 s[52:53]"); A("s_mov_b32 s54, CODE_BYTES"); A("s_mov_b32 s55, 0x20000"); A("s_and_b32 s53, s53, 0xffff")
        A("v_lshlrev_b32 v1, 7, v0")
        for i in range(3):
            A(f"buffer_load_dword v{8+i}, v1, s[52:55], 0 offen {cfg.cpfl}"); A("v_add_u32 v1, 0x8000, v1")
    A("v_lshrrev_b32 v1, 6, v0"); A("v_and_b32 v0, 63, v0"); A("v_readfirstlane_b32 s20, v1")
    A("v_lshrrev_b32 v1, 3, v0"); A("v_and_b32 v2, 6, v1"); A("v_and_b32 v3, 7, v0"); A("v_xor_b32 v2, v2, v3")
    A("v_lshlrev_b32 v2, 4, v2"); A(f"v_lshl_add_u32 v{VOFF}, v1, 8, v2")
    A("s_and_b32 s44, s2, 7"); A("s_lshr_b32 s45, s2, 3")
    A(f"s_lshl_b32 s{sLK}, s20, 11")
    A(f"s_mul_i32 s{sLQ}, s20, {QSZ}")
    for b in range(NB):
        if NB == 2:
            A("s_lshr_b32 s46, s45, 1"); A(f"s_add_u32 s46, s46, {b*16}"); A("s_and_b32 s47, s45, 1")
        else:
            A(f"s_add_u32 s47, s45, {b*32}"); A("s_mul_i32 s46, s47, 0x5556"); A("s_lshr_b32 s46, s46, 16"); A("s_mul_i32 s48, s46, 3"); A("s_sub_u32 s47, s47, s48")
        A("s_lshl_b32 s46, s46, 3"); A("s_add_u32 s46, s46, s44")
        A(f"s_lshl_b32 s{sKV(b)}, s46, 17"); A(f"s_add_u32 s{sKV(b)}, s{sKV(b)}, s{sLK}")
        A(f"s_mul_i32 s46, s46, {768*256}"); A(f"s_mul_i32 s47, s47, {4*QSZ}"); A("s_add_u32 s46, s46, s47")
        A(f"s_add_u32 s{sQ(b)}, s46, s{sLQ}")
    A(f"s_add_u32 s{sLQ}, s{sLQ}, {QST}")
    A("s_mov_b32 s6, 0x3000000"); A("s_mov_b32 s7, 0x20000"); A("s_mov_b32 s10, 0x2000000"); A("s_mov_b32 s11, 0x20000")
    A("s_mov_b32 s14, 0x2000000"); A("s_mov_b32 s15, 0x20000"); A("s_mov_b32 s18, 0x3000000"); A("s_mov_b32 s19, 0x20000")
    A(f"s_mov_b32 s{sC}, 0x{f2u(c):08x}"); A(f"s_mov_b32 s{sLO}, 0x{LO:08x}"); A(f"s_mov_b32 s{sRG}, 0x{HI-LO:08x}"); A(f"s_mov_b64 s[{sFL}:{sFL+1}], 0")
    A("v_and_b32 v1, 15, v0"); A("v_lshrrev_b32 v2, 4, v0")
    A("v_lshrrev_b32 v3, 3, v1"); A("v_lshlrev_b32 v3, 11, v3"); A("v_and_b32 v4, 7, v1"); A("v_lshl_add_u32 v3, v4, 7, v3")
    A("v_and_b32 v4, 6, v1"); A("v_xor_b32 v4, v4, v2"); A(f"v_lshl_add_u32 v{KA[0]}, v4, 4, v3"); A(f"v_xor_b32 v{KA[1]}, 64, v{KA[0]}")
    A(f"v_add_u32 v{QA[0]}, s{sLQ}, v{KA[0]}"); A(f"v_add_u32 v{QA[1]}, s{sLQ}, v{KA[1]}")
    A(f"v_mul_u32_u24 v3, {OP}, v1"); A("v_lshl_add_u32 v3, v2, 3, v3"); A(f"v_add_u32 v{OWR}, s{sLQ}, v3")
    A(f"v_mul_u32_u24 v3, {OP}, v2"); A("v_lshl_add_u32 v3, v1, 4, v3"); A(f"v_add_u32 v{ORD}, s{sLQ}, v3")
    A(f"v_lshlrev_b32 v{OOFF}, 4, v0")
    A("v_lshrrev_b32 v1, 2, v0"); A("v_and_b32 v2, 3, v0")
    A("v_lshrrev_b32 v3, 3, v1"); A("v_lshlrev_b32 v3, 11, v3"); A("v_and_b32 v4, 7, v1"); A("v_lshl_add_u32 v3, v4, 7, v3")
    A("v_and_b32 v4, 6, v1"); A("v_lshrrev_b32 v5, 1, v2"); A("v_xor_b32 v4, v4, v5"); A("v_lshl_add_u32 v3, v4, 4, v3")
    A("v_and_b32 v4, 1, v2"); A("v_lshl_add_u32 v3, v4, 3, v3"); A(f"v_add_u32 v{VA[0]}, {VRING}, v3")
    for i in range(1, 4): A(f"v_xor_b32 v{VA[i]}, {32*i}, v{VA[0]}")
    A("v_cmp_eq_u32 vcc, 0, v2"); A("v_mov_b32 v4, 0x3f803f80"); A("s_nop 1"); A("v_cndmask_b32 v4, 0, v4, vcc"); A("s_nop 0")
    for i in range(4): A(f"v_accvgpr_write_b32 a{ONES+i}, v4")
    A("s_waitcnt lgkmcnt(0)")
    A("s_mov_b32 s4, s36"); A("s_mov_b32 s5, s37"); A("s_mov_b32 s8, s38"); A("s_mov_b32 s9, s39")
    A("s_mov_b32 s12, s40"); A("s_mov_b32 s13, s41"); A("s_mov_b32 s16, s42"); A("s_mov_b32 s17, s43")
    pro = "\n".join("    " + x for x in p)
    e = []
    if cfg.timing:
        e += ["s_memtime s[40:41]", "s_waitcnt vmcnt(0) lgkmcnt(0)", "s_memtime s[42:43]", "s_memrealtime s[44:45]", "s_load_dwordx4 s[48:51], s[0:1], 32", "s_waitcnt lgkmcnt(0)",
              "s_mov_b32 s36, s50", "s_mov_b32 s37, s51", "s_mov_b32 s38, 0x100000", "s_mov_b32 s39, 0x20000", "s_sub_u32 s40, s40, s100", "s_sub_u32 s42, s42, s100",
              "v_mov_b32 v0, s40", "v_mov_b32 v1, s42", "v_mov_b32 v2, s101", "v_mov_b32 v3, s44"]
        for i in range(24):
            if i < len(stamps): e += [f"s_sub_u32 s46, s{56+2*i}, s100", f"v_mov_b32 v{4+i}, s46"]
            else: e += [f"v_mov_b32 v{4+i}, 0"]
        e += ["s_lshl_b32 s46, s2, 2", "s_add_u32 s46, s46, s20", "s_lshl_b32 s46, s46, 7", "v_mov_b32 v40, s46", "s_mov_b64 exec, 1"]
        for i in range(7): e += [f"buffer_store_dwordx4 v[{4*i}:{4*i+3}], v40, s[36:39], 0 offen offset:{16*i}"]
        e += ["s_mov_b32 s52, s48", "s_mov_b32 s53, s49", "s_mov_b32 s54, 256", "s_mov_b32 s55, 0x20000", "v_mov_b32 v40, 0", "v_not_b32 v41, v2",
              "buffer_atomic_umax v3, v40, s[52:55], 0 offen", "buffer_atomic_umax v41, v40, s[52:55], 0 offen offset:4",
              "buffer_atomic_umax v1, v40, s[52:55], 0 offen offset:8", "buffer_atomic_umax v4, v40, s[52:55], 0 offen offset:12",
              "buffer_atomic_umax v5, v40, s[52:55], 0 offen offset:16", "buffer_atomic_umax v2, v40, s[52:55], 0 offen offset:20", "buffer_atomic_umax v0, v40, s[52:55], 0 offen offset:24"]
        print("stamps at runs", stamps)
    epi = "\n".join("    " + x for x in e)
    txt = f"""; GQA attention forward: B=32 Hq=32 Hkv=8 Sq=192 Sk=512 D=128, bf16 (generated by my own scheduler script)
; @launch grid=(256,1,1) block=(256,1,1) lds={LDS}
.amdgcn_target "amdgcn-amd-amdhsa--gfx950"
.text
.globl {NAME}_kernel
.p2align 8
.type {NAME}_kernel,@function
{NAME}_kernel:
.set CODE_BYTES, L_exit - {NAME}_kernel - 64
{pro}
{body}
{epi}
L_exit:
    s_endpgm
.section .rodata,"a"
.p2align 6
.amdhsa_kernel {NAME}_kernel
  .amdhsa_next_free_vgpr 512
  .amdhsa_next_free_sgpr 102
  .amdhsa_accum_offset 256
  .amdhsa_group_segment_fixed_size 0
  .amdhsa_kernarg_size 48
  .amdhsa_user_sgpr_count 2
  .amdhsa_user_sgpr_kernarg_segment_ptr 1
  .amdhsa_system_sgpr_workgroup_id_x 1
.end_amdhsa_kernel
"""
    return txt, dict(n=len(ops), nops=nn, est=est, mfma=NM)

if __name__ == "__main__":
    out = sys.argv[1]
    kw = {}
    for a in sys.argv[2:]:
        k, v = a.split("=")
        try: v = int(v)
        except ValueError: pass
        kw[k] = v
    txt, info = build(Cfg(**kw))
    open(out, "w").write(txt)
    print(out, info, len(txt))
```

```python
import sys, math, struct
from sched import *

def f2u(x): return struct.unpack('<I', struct.pack('<f', x))[0]
NAME = "standalone__gqa_softmax__near_ridge"

class Cfg:
    nq = 6
    nslot = 4
    ldfl = "nt"
    stfl = ""
    timing = False
    head_skew = 0
    tail_skew = 0
    cpf = 0
    cpfl = ""
    vspill = False
    def __init__(self, **kw):
        for k, v in kw.items(): setattr(self, k, v)

def build(cfg):
    nq = cfg.nq; NB = 12 // nq; NS = cfg.nslot
    O = lambda qt, dt: (qt * 8 + dt) * 4
    SB = nq * 32
    S = lambda u: SB + (u % 3) * 8
    M = SB + 24
    MC = lambda qt, M0=M: M0 + qt
    M += nq
    KA = [M, M + 1]; M += 2
    VA = [M + i for i in range(4)]; M += 4
    QA = [M, M + 1]; M += 2
    VOFF = M; M += 1
    OWR = M; ORD = M + 1; OOFF = M + 2; M += 3
    TM = [M, M + 1]; M += 2
    TE = [M, M + 1]; M += 2
    TC = M; M += 1
    M = (M + 3) // 4 * 4
    NRB = min(4, (256 - M) // 4)
    RB = lambda i: M + (i % NRB) * 4
    assert NRB >= 2, M
    Q = lambda qt, s: (qt * 4 + s) * 4
    KB = nq * 16
    KF = lambda buf, kt, s: KB + buf * 32 + (kt * 4 + s) * 4
    VBs = KB + 64
    VF = lambda buf, dt: VBs + buf * 32 + dt * 4
    LB = VBs + 64
    L = lambda qt: LB + qt * 4
    ONES = LB + nq * 4
    assert ONES + 4 <= 256
    KRING = 0; VRING = NS * 8192; QST = 2 * NS * 8192; QSZ = nq * 4096
    LDS = QST + 4 * QSZ
    assert LDS <= 160 * 1024
    OP = 272
    sQ = lambda b: 21 + b
    sKV = lambda b: 24 + b
    sLK, sLQ, sC, sSO, sST, sFL, sLO, sRG = 27, 28, 29, 30, 31, 32, 34, 35

    runs = []
    allq = list(range(nq)); h1 = allq[:nq // 2]; h2 = allq[nq // 2:]
    for b in range(NB):
        hs = cfg.head_skew if b == 0 else 0
        ts = cfg.tail_skew if b == NB - 1 else 0
        for t in range(hs): runs.append((b, t, h1))
        for t in range(hs): runs.append((b, t, h2))
        for t in range(hs, 16 - ts): runs.append((b, t, allq))
        for t in range(16 - ts, 16): runs.append((b, t, h1))
        for t in range(16 - ts, 16): runs.append((b, t, h2))
    units = []
    for r, (b, t, qs) in enumerate(runs):
        for qt in qs: units.append((b, t, qt, r))
    NU = len(units); NR = len(runs)
    mf = []; qk = {}; pv = {}; slot0 = {}
    def mfma(d, a, bb, c):
        dp, da = d; ap, aa = a; bp, ba = bb
        ct = "0" if c is None else rr(dp, da, 4)
        mf.append(Op(f"v_mfma_f32_16x16x32_bf16 {rr(dp,da,4)}, {rr(ap,aa,4)}, {rr(bp,ba,4)}, {ct}", 'mfma',
                     reads=rs(ap, aa, 4) | rs(bp, ba, 4), writes=rs(dp, da, 4), creads=(rs(dp, da, 4) if c else ())))
        return len(mf) - 1
    for i in range(NU + 2):
        slot0[i] = len(mf)
        if i < NU:
            b, t, qt, r = units[i]
            qk[i] = [mfma(('v', S(i) + kt * 4), ('a', KF(r % 2, kt, s)), ('a', Q(qt, s)), (s > 0) or None) for kt in range(2) for s in range(4)]
        if i >= 2:
            u = i - 2; b, t, qt, r = units[u]
            acc = (t > 0) or None
            l = [mfma(('a', L(qt)), ('a', ONES), ('v', S(u)), acc)]
            l += [mfma(('v', O(qt, dt)), ('a', VF(r % 2, dt)), ('v', S(u)), acc) for dt in range(8)]
            pv[u] = l
    NM = len(mf)
    slot0[NU + 2] = NM
    F = []
    REF = [(-1, 0)]
    def add(*a, **k):
        o = Op(*a, **k); o.ref = REF[0]; F.append(o); return o
    for u in range(NU):
        for i in qk[u]: mf[i].ref = (u, 3)
        for i in pv[u]: mf[i].ref = (u, 6)
    run_units = {r: [u for u in range(NU) if units[u][3] == r] for r in range(NR)}
    run_start = {r: slot0[run_units[r][0]] for r in range(NR)}
    run_start[NR] = slot0[NU]; run_start[-1] = -1

    dmas = []
    def dma_pair(srd, sbase, goff, lbase, loff, target, dep, hard):
        d = dict(target=target, dep=dep, hard=hard, srd=srd, sbase=sbase, goff=goff, lbase=lbase, loff=loff, ops=[])
        fl = (" " + cfg.ldfl) if cfg.ldfl else ""
        for h in range(2):
            d['ops'].append(Op(f"buffer_load_dwordx4 v{VOFF}, s[{srd}:{srd+3}], s{sSO} offen" + (" offset:128" if h else "") + fl + " lds", 'dma',
                               reads={f"v{VOFF}", f"s{sSO}", "m0"}))
        for h in range(2):
            if lbase == sLK: d['ops'][h].mwrites = {f"R{loff}_{h}"}
            else: d['ops'][h].mwrites = {f"P{(loff + h * 1024 + 256 * x) // 256}" for x in range(4)}
        dmas.append(d); return d

    bar = {}
    for r in range(-1, NR - 1):
        g = run_start[r] if r != 0 else slot0[run_units[0][len(run_units[0]) // 2]]
        bar[r] = add("s_barrier", 'barrier', earliest=g, target=g - 3, deadline=g + 2)
    seq = lambda b, t: b * 16 + t
    first_run = {}; last_run = {}
    for r, (b, t, qs) in enumerate(runs):
        first_run.setdefault(seq(b, t), r); last_run[seq(b, t)] = r
    kd = {}; vd = {}
    pro = []
    for sq in range(NB * 16):
        b, t = divmod(sq, 16)
        for (name, srd, ring, tab) in (('K', 8, KRING, kd), ('V', 12, VRING, vd)):
            if sq < NS:
                tab[sq] = dma_pair(srd, sKV(b), t * 8192, sLK, ring + (sq % NS) * 8192, -1, None, -1)
            else:
                fr = last_run[sq - NS] + (1 if (name == 'V' and (cfg.vspill or len(runs[last_run[sq - NS] - 1][2]) < 5)) else 0)
                need = first_run[sq] - 1
                assert fr < need, (sq, fr, need)
                g0 = bar[fr].earliest; span = run_start[fr + 1] - g0
                tab[sq] = dma_pair(srd, sKV(b), t * 8192, sLK, ring + (sq % NS) * 8192,
                                   g0 + (span * (1 if name == 'K' else 3)) // 5, bar[fr], bar[need].earliest - 1)
                tab[sq]['free_bar'] = fr
            bar[first_run[sq] - 1].need_vm += tab[sq]['ops']
            tab[sq]['ref'] = (run_units[first_run[sq]][0], 0)
    qd = {}
    for b in range(NB):
        for qt in range(nq):
            for rg in range(2):
                if b == 0: tg = -1; hd = -1
                else:
                    lo = run_start[first_run[seq(b - 1, 4)]]; hi = run_start[first_run[seq(b - 1, 13)]]
                    tg = lo + (hi - lo) * (qt * 2 + rg) // (2 * nq) + 7; hd = hi + 40
                qd[b, qt, rg] = dma_pair(4, sQ(b), qt * 4096 + rg * 2048, sLQ, qt * 4096 + rg * 2048, tg, None, hd)
                qd[b, qt, rg]['ref'] = ((run_units[first_run[seq(b - 1, 8)]][0] if b else -1), 0)
    order = [kd[0], vd[0]] + [qd[0, qt, rg] for qt in range(nq) for rg in range(2)]
    for sq in range(1, NS): order += [kd[sq], vd[sq]]
    rest = sorted([d for d in dmas if d['target'] >= 0], key=lambda d: d['target'])
    prev = None
    for d in order + rest:
        tg = d['target']; hd = d['hard']
        REF[0] = d['ref'] + (len(F), 0)
        d['ops'][0].ref = d['ref'] + (len(F), 1); d['ops'][1].ref = d['ref'] + (len(F), 3); ref2 = d['ref'] + (len(F), 2)
        deps = [prev] if prev else []
        a = add(f"s_add_u32 s{sSO}, s{d['sbase']}, {d['goff']}", 'salu', reads={f"s{d['sbase']}"}, writes={f"s{sSO}"}, deps=deps, target=tg - 3, hard=hd)
        m = add(f"s_add_u32 m0, s{d['lbase']}, {d['loff']}", 'salu', writes={"m0"}, deps=deps, target=tg - 2, hard=hd)
        o0, o1 = d['ops']
        o0.deps = [(a, 1), (m, 1)] + ([(d['dep'], 0)] if d['dep'] else []); o0.target = tg; o0.earliest = tg - 8; o0.hard = hd; o0.deadline = min(hd, tg + 30)
        m2 = add(f"s_add_u32 m0, s{d['lbase']}, {d['loff'] + 1024 - 128}", 'salu', writes={"m0"}, deps=[o0], target=tg + 1, hard=hd)
        m2.ref = ref2
        o1.deps = [(m2, 1)]; o1.target = tg + (2 if tg >= 0 else 0); o1.earliest = tg - 8; o1.hard = hd; o1.deadline = min(hd, tg + 32)
        F.extend([o0, o1]); prev = o1
    last_pro_dma = order[-1]['ops'][1]
    bar[-1].deps.append((last_pro_dma, 0))

    LAT = 7
    for r in range(NR):
        b, t, qs = runs[r]; sq = seq(b, t); sl = sq % NS
        u0 = run_units[r][0]
        pb = bar[r - 1]; g0 = pb.earliest + 1
        kfree = qk[run_units[r - 2][-1]] if r >= 2 else None
        vfree = pv[run_units[r - 2][-1]] if r >= 2 else None
        vstart = max(g0, (vfree[1] if vfree else -1))
        spill = cfg.vspill or (r >= 1 and len(runs[r - 1][2]) < 5) or r == 0
        kend = min(run_start[r] - LAT, vstart if not spill else 10**9)
        kend = max(kend, g0)
        kops = []
        REF[0] = (u0, 2)
        for kt in range(2):
            for s in range(4):
                i = kt * 4 + s
                o = add(f"ds_read_b128 {rr('a', KF(r % 2, kt, s), 4)}, v{KA[s % 2]} offset:{KRING + sl * 8192 + kt * 4096 + (s // 2) * 1024}", 'ldsr',
                        reads={f"v{KA[s%2]}"}, writes=rs('a', KF(r % 2, kt, s), 4), deps=[pb],
                        after=(kfree[i] if kfree else -1), target=g0 + (kend - g0) * i // 8, deadline=qk[u0][i] - LAT, hard=qk[u0][i] - 1)
                kops.append(o); o.mreads = {f"R{KRING + sl * 8192}_{s // 2}"}
        vend = (pv[u0][1] - LAT) if spill else (run_start[r] - 4)
        vend = max(vend, vstart)
        vops = []
        for dt in range(8):
            for h in range(2):
                i = dt * 2 + h
                o = add(f"ds_read_b64_tr_b16 {rr('a', VF(r % 2, dt) + 2 * h, 2)}, v{VA[dt % 4]} offset:{sl * 8192 + h * 4096 + (dt // 4) * 1024}", 'ldsr',
                        reads={f"v{VA[dt%4]}"}, writes=rs('a', VF(r % 2, dt) + 2 * h, 2), deps=[pb],
                        after=(vfree[1 + dt] if vfree else -1), target=vstart + (vend - vstart) * i // 16, deadline=pv[u0][1 + dt] - LAT, hard=pv[u0][1 + dt] - 1)
                vops.append(o); o.mreads = {f"R{VRING + sl * 8192}_{dt // 4}"}
        if last_run[sq] == r and sq + NS < NB * 16:
            fb = bar[kd[sq + NS]['free_bar']]; fb.deps += [(o, 3) for o in kops]; fb.need_lgkm += kops
            fb = bar[vd[sq + NS]['free_bar']]; fb.deps += [(o, 3) for o in vops]; fb.need_lgkm += vops
    for r in range(0, NR - 1): bar[r].deps.append((bar[r - 1], 0))

    firstu = {}; lastu = {}
    for u, (b, t, qt, r) in enumerate(units):
        firstu.setdefault((b, qt), u); lastu[b, qt] = u
    qread = {}
    for b in range(NB):
        for qt in range(nq):
            u = firstu[b, qt]
            REF[0] = (lastu[b - 1, qt], 4) if b else (-1, 1)
            for s in range(4):
                aft = qk[lastu[b - 1, qt]][4 + s] if b else -1
                dl = qk[u][s] - LAT
                qread[b, qt, s] = add(f"ds_read_b128 {rr('a', Q(qt, s), 4)}, v{QA[s % 2]} offset:{qt * 4096 + (s // 2) * 1024}", 'ldsr',
                    reads={f"v{QA[s%2]}"}, writes=rs('a', Q(qt, s), 4), need_vm=qd[b, qt, 0]['ops'] + qd[b, qt, 1]['ops'],
                    deps=[qd[b, qt, 1]['ops'][1]] + ([bar[-1]] if b == 0 else []),
                    after=aft, earliest=(dl - 6 if b == 0 else aft), target=(dl - 4 if b == 0 else aft + 2), deadline=dl, hard=qk[u][s] - 1)
                qread[b, qt, s].mreads = {f"P{(qt * 4096 + rg * 2048 + (s // 2) * 1024) // 256 + x}" for rg in range(2) for x in range(4)}

    lastf = {}
    for u, (b, t, qt, r) in enumerate(units):
        sb = S(u); st0 = slot0[u + 1]; hard = pv[u][0] - 1
        mdep = []
        REF[0] = (u, 5)
        if u == firstu[b, qt]:
            e0 = qk[u][7] + 4; a0 = qk[u][7]
            t0, t1 = TM
            ch = []
            def chain(text, kind, reads, writes, mg=0, extra=()):
                o = add(text, kind, reads=reads, writes=writes, deps=([(ch[-1], mg)] if ch else list(extra)) + ([] if not ch else list(extra)), after=a0, earliest=e0, target=e0 - 6 + len(ch) // 2, hard=hard)
                ch.append(o)
            v = lambda x: f"v{x}"
            chain(f"v_max3_f32 v{t0}, v{sb}, v{sb+1}, v{sb+2}", 'valu', {v(sb), v(sb+1), v(sb+2)}, {v(t0)}, extra=([lastf['max']] if 'max' in lastf else []))
            chain(f"v_max3_f32 v{t1}, v{sb+3}, v{sb+4}, v{sb+5}", 'valu', {v(sb+3), v(sb+4), v(sb+5)}, {v(t1)})
            chain(f"v_max3_f32 v{t0}, v{t0}, v{sb+6}, v{sb+7}", 'valu', {v(t0), v(sb+6), v(sb+7)}, {v(t0)})
            chain(f"v_max_f32 v{t0}, v{t0}, v{t1}", 'valu', {v(t0), v(t1)}, {v(t0)})
            chain(f"v_mov_b32 v{t1}, v{t0}", 'valu', {v(t0)}, {v(t1)})
            chain(f"v_permlane32_swap_b32 v{t0}, v{t1}", 'perm', {v(t0), v(t1)}, {v(t0), v(t1)}, mg=2)
            chain(f"v_max_f32 v{t0}, v{t0}, v{t1}", 'valu', {v(t0), v(t1)}, {v(t0)}, mg=1)
            chain(f"v_mov_b32 v{t1}, v{t0}", 'valu', {v(t0)}, {v(t1)})
            chain(f"v_permlane16_swap_b32 v{t0}, v{t1}", 'perm', {v(t0), v(t1)}, {v(t0), v(t1)}, mg=2)
            chain(f"v_max_f32 v{t0}, v{t0}, v{t1}", 'valu', {v(t0), v(t1)}, {v(t0)}, mg=1)
            chain(f"v_mul_f32 v{MC(qt)}, s{sC+0}, v{t0}".replace(f"s{sC}", f"s{sC}"), 'valu', {v(t0)}, {v(MC(qt))}, extra=lastf.get(qt, []))
            mdep = [ch[-1]]; lastf['max'] = ch[-1]
        fs = []; es = []
        for k in range(8):
            a0 = qk[u][3 if k < 4 else 7]
            f = add(f"v_fma_f32 v{sb+k}, v{sb+k}, s{sC}, -v{MC(qt)}", 'valu', reads={f"v{sb+k}", f"v{MC(qt)}"}, writes={f"v{sb+k}"},
                    deps=mdep, after=a0, earliest=a0 + 4, target=st0 + 2 * k - 2, hard=hard)
            e = add(f"v_exp_f32 v{sb+k}, v{sb+k}", 'trans', reads={f"v{sb+k}"}, writes={f"v{sb+k}"}, deps=[f], after=a0, target=st0 + 2 * k, hard=hard,
                    deadline=hard - 2 - (7 - k))
            fs.append(f); es.append(e)
        lastf[qt] = fs
        pc = None
        for j in range(4):
            c = add(f"v_cvt_pk_bf16_f32 v{sb+j}, v{sb+2*j}, v{sb+2*j+1}", 'valu', reads={f"v{sb+2*j}", f"v{sb+2*j+1}"}, writes={f"v{sb+j}"},
                    deps=[(es[2 * j], 1), (es[2 * j + 1], 1)] + ([pc] if pc else []), after=qk[u][3], target=st0 + 4 * j + 4, deadline=hard - 1, hard=hard)
            pc = c

    eorder = sorted([(lastu[k], k) for k in lastu])
    prev_dsr = {}; prev_st = {}; prev_last_st = None; prev_mul = {}; prev_chk = None
    rbc = 0
    for n_e, (u, (b, qt)) in enumerate(eorder):
        nxt = pv[firstu[b + 1, qt]] if b + 1 < NB else None
        te = TE[n_e % 2]; ob = (n_e % 2) * 16 * OP
        base = pv[u][0]
        REF[0] = (u + 2, 7)
        oreg = {f"P{x}" for x in range(ob // 256, (ob + 16 * OP + 255) // 256)}
        span = (nxt[0] - base - 12) if nxt else 17
        span = min(span, 17 * 2)
        hd = lambda i: (nxt[i] - 1) if nxt else 10**9
        rd = add(f"v_accvgpr_read_b32 v{te}, a{L(qt)}", 'valu', reads={f"a{L(qt)}"}, writes={f"v{te}"}, after=base, earliest=base + 4, target=base + 2, hard=hd(0),
                 deps=prev_mul.get(n_e % 2, []))
        c1 = add(f"v_subrev_u32 v{TC}, s{sLO}, v{te}", 'valu', reads={f"v{te}"}, writes={f"v{TC}"}, deps=[rd] + ([prev_chk] if prev_chk else []), target=base + 3, hard=hd(1))
        c2 = add(f"v_cmp_lt_u32 vcc, s{sRG}, v{TC}", 'valu', reads={f"v{TC}"}, writes={"vcc"}, deps=[c1], target=base + 4, hard=hd(1))
        c3 = add(f"s_or_b64 s[{sFL}:{sFL+1}], s[{sFL}:{sFL+1}], vcc", 'salu', reads={"vcc"}, writes={f"s{sFL}"}, deps=[(c2, 2)], target=base + 6, hard=hd(1))
        prev_chk = c3
        rc = add(f"v_rcp_f32 v{te}, v{te}", 'trans', reads={f"v{te}"}, writes={f"v{te}"}, deps=[c1], target=base + 4, hard=hd(1))
        dsw = []; muls = []
        for dt in range(8):
            o = O(qt, dt); a0 = pv[u][1 + dt]; tg = base + 6 + span * dt // 8
            ms = [add(f"v_mul_f32 v{o+i}, v{o+i}, v{te}", 'valu', reads={f"v{o+i}", f"v{te}"}, writes={f"v{o+i}"}, deps=[(rc, 1)], after=a0, earliest=a0 + 4, target=tg, hard=hd(1 + dt)) for i in range(4)]
            muls += ms
            x0 = add(f"v_cvt_pk_bf16_f32 v{o}, v{o}, v{o+1}", 'valu', reads={f"v{o}", f"v{o+1}"}, writes={f"v{o}"}, deps=ms[:2], target=tg + 1, hard=hd(1 + dt))
            x1 = add(f"v_cvt_pk_bf16_f32 v{o+1}, v{o+2}, v{o+3}", 'valu', reads={f"v{o+2}", f"v{o+3}"}, writes={f"v{o+1}"}, deps=ms[2:] + [x0], target=tg + 1, hard=hd(1 + dt))
            qdeps = [qread[b + 1, q2, 3] for q2 in range(min(3, nq)) if (b + 1, q2, 3) in qread and (q2 * 4096 < ob + 16 * OP and (q2 + 1) * 4096 > ob)]
            qdeps = [qread[b + 1, q2, s] for q2 in range(min(3, nq)) for s in range(4) if (b + 1, q2, s) in qread and (q2 * 4096 < ob + 16 * OP and (q2 + 1) * 4096 > ob)]
            w = add(f"ds_write_b64 v{OWR}, v[{o}:{o+1}] offset:{ob + dt * 32}", 'ldsw', reads={f"v{OWR}", f"v{o}", f"v{o+1}"}, deps=[(x0, 1), (x1, 1)] + prev_dsr.get(n_e % 2, []) + qdeps,
                    target=tg + 2, deadline=hd(1 + dt) - 2, hard=hd(1 + dt))
            dsw.append(w); w.mwrites = oreg | {f"XO{n_e % 2}_{dt}"}
        prev_mul[n_e % 2] = muls
        tg = base + 8 + span
        sa = add(f"s_add_u32 s{sST}, s{sQ(b)}, {qt * 4096}", 'salu', writes={f"s{sST}"}, deps=([prev_last_st] if prev_last_st else []), target=tg)
        dsr = []
        fl = (" " + cfg.stfl) if cfg.stfl else ""
        for i in range(4):
            rb = RB(rbc); key = rbc % NRB; rbc += 1
            x = add(f"ds_read_b128 {rr('v', rb, 4)}, v{ORD} offset:{ob + i * 4 * OP}", 'ldsr', reads={f"v{ORD}"}, writes=rs('v', rb, 4),
                    deps=dsw + ([(prev_st[key], 1)] if key in prev_st else []), target=tg + i, deadline=tg + i + 20)
            y = add(f"buffer_store_dwordx4 {rr('v', rb, 4)}, v{OOFF}, s[16:19], s{sST} offen offset:{i * 1024}{fl}", 'store', reads=rs('v', rb, 4) | {f"v{OOFF}", f"s{sST}"},
                    deps=[(x, LAT), (sa, 1)] + ([prev_last_st] if prev_last_st else []), target=tg + i + LAT, deadline=tg + i + LAT + 20)
            prev_st[key] = y; prev_last_st = y; dsr.append(x); x.mreads = oreg | {f"XO{n_e % 2}_{dt}" for dt in range(8)}
        prev_dsr[n_e % 2] = dsr
        if b + 2 < NB:
            for q2 in range(min(3, nq)):
                for rg in range(2):
                    o0 = qd[b + 2, q2, rg]['ops'][0]; o0.deps += [(x, 0) for x in dsr]; o0.need_lgkm += dsr

    stamps = []
    if cfg.timing:
        want = [r for r in range(NR) if (r < 4 or r % 2 == 0 or runs[r][1] in (15, 1))][:15 + 8]
        step = 1
        want = want[:22]
        for i, r in enumerate(want):
            REF[0] = (0, 9)
            add(f"s_memtime s[{56 + 2 * i}:{57 + 2 * i}]", 'salu', earliest=run_start[r], target=run_start[r] - 5, deadline=run_start[r] + 1)
            stamps.append(r)
    st = Stream()
    schedule(st, mf, F)
    ops, nn = fix_hazards(st.out)
    est = estimate(ops)
    nb1 = verify_dataflow(ops, mf + F); nb2 = verify_lds_protocol(ops)
    assert nb1 == 0 and nb2 == 0, (nb1, nb2)
    body = "\n".join("    " + o.text for o in ops)

    c = math.log2(math.e) / math.sqrt(128.0)
    LO = f2u(2.0 ** -20); HI = f2u(2.0 ** 20)
    p = []
    A = p.append
    A("s_cmp_ge_u32 s2, 256"); A("s_cbranch_scc1 L_exit")
    A("s_load_dwordx4 s[36:39], s[0:1], 0"); A("s_load_dwordx4 s[40:43], s[0:1], 16")
    if cfg.timing:
        A("s_memtime s[46:47]"); A("s_memrealtime s[48:49]"); A("s_waitcnt lgkmcnt(0)"); A("s_mov_b32 s100, s46"); A("s_mov_b32 s101, s48")
    if cfg.cpf:
        A("s_getpc_b64 s[52:53]"); A("s_mov_b32 s54, CODE_BYTES"); A("s_mov_b32 s55, 0x20000"); A("s_and_b32 s53, s53, 0xffff")
        A("v_lshlrev_b32 v1, 7, v0")
        for i in range(3):
            A(f"buffer_load_dword v{8+i}, v1, s[52:55], 0 offen {cfg.cpfl}"); A("v_add_u32 v1, 0x8000, v1")
    A("v_lshrrev_b32 v1, 6, v0"); A("v_and_b32 v0, 63, v0"); A("v_readfirstlane_b32 s20, v1")
    A("v_lshrrev_b32 v1, 3, v0"); A("v_and_b32 v2, 6, v1"); A("v_and_b32 v3, 7, v0"); A("v_xor_b32 v2, v2, v3")
    A("v_lshlrev_b32 v2, 4, v2"); A(f"v_lshl_add_u32 v{VOFF}, v1, 8, v2")
    A("s_and_b32 s44, s2, 7"); A("s_lshr_b32 s45, s2, 3")
    A(f"s_lshl_b32 s{sLK}, s20, 11")
    A(f"s_mul_i32 s{sLQ}, s20, {QSZ}")
    for b in range(NB):
        if NB == 2:
            A("s_lshr_b32 s46, s45, 1"); A(f"s_add_u32 s46, s46, {b*16}"); A("s_and_b32 s47, s45, 1")
        else:
            A(f"s_add_u32 s47, s45, {b*32}"); A("s_mul_i32 s46, s47, 0x5556"); A("s_lshr_b32 s46, s46, 16"); A("s_mul_i32 s48, s46, 3"); A("s_sub_u32 s47, s47, s48")
        A("s_lshl_b32 s46, s46, 3"); A("s_add_u32 s46, s46, s44")
        A(f"s_lshl_b32 s{sKV(b)}, s46, 17"); A(f"s_add_u32 s{sKV(b)}, s{sKV(b)}, s{sLK}")
        A(f"s_mul_i32 s46, s46, {768*256}"); A(f"s_mul_i32 s47, s47, {4*QSZ}"); A("s_add_u32 s46, s46, s47")
        A(f"s_add_u32 s{sQ(b)}, s46, s{sLQ}")
    A(f"s_add_u32 s{sLQ}, s{sLQ}, {QST}")
    A("s_mov_b32 s6, 0x3000000"); A("s_mov_b32 s7, 0x20000"); A("s_mov_b32 s10, 0x2000000"); A("s_mov_b32 s11, 0x20000")
    A("s_mov_b32 s14, 0x2000000"); A("s_mov_b32 s15, 0x20000"); A("s_mov_b32 s18, 0x3000000"); A("s_mov_b32 s19, 0x20000")
    A(f"s_mov_b32 s{sC}, 0x{f2u(c):08x}"); A(f"s_mov_b32 s{sLO}, 0x{LO:08x}"); A(f"s_mov_b32 s{sRG}, 0x{HI-LO:08x}"); A(f"s_mov_b64 s[{sFL}:{sFL+1}], 0")
    A("v_and_b32 v1, 15, v0"); A("v_lshrrev_b32 v2, 4, v0")
    A("v_lshrrev_b32 v3, 3, v1"); A("v_lshlrev_b32 v3, 11, v3"); A("v_and_b32 v4, 7, v1"); A("v_lshl_add_u32 v3, v4, 7, v3")
    A("v_and_b32 v4, 6, v1"); A("v_xor_b32 v4, v4, v2"); A(f"v_lshl_add_u32 v{KA[0]}, v4, 4, v3"); A(f"v_xor_b32 v{KA[1]}, 64, v{KA[0]}")
    A(f"v_add_u32 v{QA[0]}, s{sLQ}, v{KA[0]}"); A(f"v_add_u32 v{QA[1]}, s{sLQ}, v{KA[1]}")
    A(f"v_mul_u32_u24 v3, {OP}, v1"); A("v_lshl_add_u32 v3, v2, 3, v3"); A(f"v_add_u32 v{OWR}, s{sLQ}, v3")
    A(f"v_mul_u32_u24 v3, {OP}, v2"); A("v_lshl_add_u32 v3, v1, 4, v3"); A(f"v_add_u32 v{ORD}, s{sLQ}, v3")
    A(f"v_lshlrev_b32 v{OOFF}, 4, v0")
    A("v_lshrrev_b32 v1, 2, v0"); A("v_and_b32 v2, 3, v0")
    A("v_lshrrev_b32 v3, 3, v1"); A("v_lshlrev_b32 v3, 11, v3"); A("v_and_b32 v4, 7, v1"); A("v_lshl_add_u32 v3, v4, 7, v3")
    A("v_and_b32 v4, 6, v1"); A("v_lshrrev_b32 v5, 1, v2"); A("v_xor_b32 v4, v4, v5"); A("v_lshl_add_u32 v3, v4, 4, v3")
    A("v_and_b32 v4, 1, v2"); A("v_lshl_add_u32 v3, v4, 3, v3"); A(f"v_add_u32 v{VA[0]}, {VRING}, v3")
    for i in range(1, 4): A(f"v_xor_b32 v{VA[i]}, {32*i}, v{VA[0]}")
    A("v_cmp_eq_u32 vcc, 0, v2"); A("v_mov_b32 v4, 0x3f803f80"); A("s_nop 1"); A("v_cndmask_b32 v4, 0, v4, vcc"); A("s_nop 0")
    for i in range(4): A(f"v_accvgpr_write_b32 a{ONES+i}, v4")
    A("s_waitcnt lgkmcnt(0)")
    A("s_mov_b32 s4, s36"); A("s_mov_b32 s5, s37"); A("s_mov_b32 s8, s38"); A("s_mov_b32 s9, s39")
    A("s_mov_b32 s12, s40"); A("s_mov_b32 s13, s41"); A("s_mov_b32 s16, s42"); A("s_mov_b32 s17, s43")
    pro = "\n".join("    " + x for x in p)
    e = []
    if cfg.timing:
        e += ["s_memtime s[40:41]", "s_waitcnt vmcnt(0) lgkmcnt(0)", "s_memtime s[42:43]", "s_memrealtime s[44:45]", "s_load_dwordx4 s[48:51], s[0:1], 32", "s_waitcnt lgkmcnt(0)",
              "s_mov_b32 s36, s50", "s_mov_b32 s37, s51", "s_mov_b32 s38, 0x100000", "s_mov_b32 s39, 0x20000", "s_sub_u32 s40, s40, s100", "s_sub_u32 s42, s42, s100",
              "v_mov_b32 v0, s40", "v_mov_b32 v1, s42", "v_mov_b32 v2, s101", "v_mov_b32 v3, s44"]
        for i in range(24):
            if i < len(stamps): e += [f"s_sub_u32 s46, s{56+2*i}, s100", f"v_mov_b32 v{4+i}, s46"]
            else: e += [f"v_mov_b32 v{4+i}, 0"]
        e += ["s_lshl_b32 s46, s2, 2", "s_add_u32 s46, s46, s20", "s_lshl_b32 s46, s46, 7", "v_mov_b32 v40, s46", "s_mov_b64 exec, 1"]
        for i in range(7): e += [f"buffer_store_dwordx4 v[{4*i}:{4*i+3}], v40, s[36:39], 0 offen offset:{16*i}"]
        e += ["s_mov_b32 s52, s48", "s_mov_b32 s53, s49", "s_mov_b32 s54, 64", "s_mov_b32 s55, 0x20000", "v_sub_u32 v2, v3, v2"]
        for i in range(4): e += [f"buffer_store_dwordx4 v[{4*i}:{4*i+3}], v40, s[52:55], 0 offen offset:{16*i}"]
        print("stamps at runs", stamps)
    epi = "\n".join("    " + x for x in e)
    txt = f"""; GQA attention forward: B=32 Hq=32 Hkv=8 Sq=192 Sk=512 D=128, bf16 (generated by my own scheduler script)
; @launch grid=(256,1,1) block=(256,1,1) lds={LDS}
.amdgcn_target "amdgcn-amd-amdhsa--gfx950"
.text
.globl {NAME}_kernel
.p2align 8
.type {NAME}_kernel,@function
{NAME}_kernel:
.set CODE_BYTES, L_exit - {NAME}_kernel - 64
{pro}
{body}
{epi}
L_exit:
    s_endpgm
.section .rodata,"a"
.p2align 6
.amdhsa_kernel {NAME}_kernel
  .amdhsa_next_free_vgpr 512
  .amdhsa_next_free_sgpr 102
  .amdhsa_accum_offset 256
  .amdhsa_group_segment_fixed_size 0
  .amdhsa_kernarg_size 48
  .amdhsa_user_sgpr_count 2
  .amdhsa_user_sgpr_kernarg_segment_ptr 1
  .amdhsa_system_sgpr_workgroup_id_x 1
.end_amdhsa_kernel
"""
    return txt, dict(n=len(ops), nops=nn, est=est, mfma=NM)

if __name__ == "__main__":
    out = sys.argv[1]
    kw = {}
    for a in sys.argv[2:]:
        k, v = a.split("="); v = v.replace("_", " ")
        try: v = int(v)
        except ValueError: pass
        kw[k] = v
    txt, info = build(Cfg(**kw))
    open(out, "w").write(txt)
    print(out, info, len(txt))
```

```python
import re

def rr(p, a, n=1):
    return f"{p}{a}" if n == 1 else f"{p}[{a}:{a+n-1}]"
def rs(p, a, n=1):
    return {f"{p}{a+i}" for i in range(n)}

class Op:
    _id = 0
    def __init__(self, text, kind, reads=(), writes=(), cost=None, earliest=-1, deadline=10**9, target=None,
                 deps=(), need_vm=(), need_lgkm=(), creads=(), after=-1, hard=10**9):
        self.text = text; self.kind = kind
        self.reads = set(reads); self.writes = set(writes); self.creads = set(creads)
        dc = dict(mfma=8, valu=4, trans=8, perm=8, ldsr=4, ldsw=12, dma=8, store=16, salu=0, barrier=8, wait=0, nop=4, vload=8, pk=4, grp=0)
        self.cost = dc[kind] if cost is None else cost
        self.after = after; self.hard = hard
        self.earliest = max(earliest, after); self.deadline = min(deadline, hard)
        self.target = target if target is not None else self.earliest
        self.deps = []
        for d in deps:
            self.deps.append(d if isinstance(d, tuple) else (d, 0))
        self.need_vm = list(need_vm)
        self.need_lgkm = list(need_lgkm)
        self.gap = None
        self.id = Op._id; Op._id += 1
    def __repr__(self): return self.text

VM = ('dma', 'store', 'vload')
LG = ('ldsr', 'ldsw')
VAL = ('valu', 'trans', 'perm', 'pk', 'grp')

class Stream:
    def __init__(self):
        self.out = []
        self.vm = []
        self.lg = []
        self.cur_gap = -1
        self.queue = []
        self.depth = 0
    def pump_one(self):
        for o in self.queue.pop(0):
            o.gap = self.cur_gap; self.out.append(o)
            if o.kind in VM: self.vm.append(o)
    def topup(self):
        while self.queue and len(self.vm) + 2 <= self.depth: self.pump_one()
    def pump_for(self, ops):
        need = [x for o in ops for x in o.need_vm]
        did = False
        while True:
            self.topup()
            inq = any(x.gap is None for x in need)
            left = [i for i, x in enumerate(self.vm) if x in need]
            if not inq and not left: break
            if not self.queue: break
            n = max(len(self.vm) - 2, 0)
            self.out.append(Op(f"s_waitcnt vmcnt({n})", 'wait')); self.vm = self.vm[len(self.vm) - n:] if n else []
            did = True
        return did
    def needs(self, op):
        nv = nl = None
        for i, o in enumerate(self.vm):
            if o in op.need_vm or (o.kind == 'vload' and (o.writes & (op.reads | op.writes))):
                nv = len(self.vm) - 1 - i
        for i, o in enumerate(self.lg):
            if o in op.need_lgkm or (o.writes & (op.reads | op.writes)):
                nl = len(self.lg) - 1 - i
        return nv, nl
    def wait(self, nv, nl, coalesce=8):
        if nl is not None:
            young = sum(1 for o in self.lg if o.gap is not None and o.gap > self.cur_gap - coalesce)
            nl = min(nl, young, 15)
        if nv is not None: nv = min(nv, 63)
        t = "s_waitcnt"
        if nv is not None:
            t += f" vmcnt({nv})"; self.vm = self.vm[len(self.vm) - nv:] if nv else []
        if nl is not None:
            t += f" lgkmcnt({nl})"; self.lg = self.lg[len(self.lg) - nl:] if nl else []
        self.out.append(Op(t, 'wait'))
    def emit(self, op):
        if self.queue and op.need_vm: self.pump_for([op])
        nv, nl = self.needs(op)
        if nv is not None or nl is not None: self.wait(nv, nl)
        op.gap = self.cur_gap
        if op.kind == 'grp':
            for x in op.subs:
                x.gap = self.cur_gap; self.out.append(x)
            return
        self.out.append(op)
        if op.kind in VM: self.vm.append(op)
        if op.kind in LG: self.lg.append(op)

def propagate_deadlines(fillers):
    changed = True
    order = sorted(fillers, key=lambda o: -o.id)
    users = {}
    for _ in range(50):
        changed = False
        for o in order:
            for d, mg in o.deps:
                if d.kind == 'mfma' or d.gap is not None: continue
                if d.deadline > o.deadline - mg:
                    d.deadline = o.deadline - mg; changed = True
                if d.target > o.target - mg:
                    d.target = o.target - mg; changed = True
        if not changed: break

def schedule(st, mfmas, fillers, cap=8, lookahead=40, late=3, maxover=40):
    propagate_deadlines(fillers)
    pend = sorted(fillers, key=lambda o: (o.target, o.id))
    n = len(mfmas)
    def ready(o, g, chosen):
        if o.earliest > g: return False
        for d, mg in o.deps:
            if d.gap is None:
                if mg == 0 and d in chosen:
                    if (d.kind in VAL) and (o.kind not in VAL): return False
                    continue
                return False
            if d.gap + mg > g: return False
        return True
    cyc = 0
    for g in range(-1, n):
        st.cur_gap = g
        if g >= 0:
            st.emit(mfmas[g])
        last = (g == n - 1)
        chosen = []
        shadow_used = False
        nxt = mfmas[g + 1] if g + 1 < n else None
        room = cap if g >= 0 else 0
        window = [o for o in pend if o.target <= g + lookahead or o.deadline <= g]
        def take(o):
            chosen.append(o); pend.remove(o); window.remove(o)
        forced_lim = g
        def nonsalu(grp=False):
            nw = sum(1 for o in chosen if o.kind in ('ldsw', 'store'))
            return [o for o in window if o.kind != 'salu' and (o.kind == 'grp') == grp and not (nw and o.kind in ('ldsw', 'store')) and ready(o, g, chosen)]
        forced = [o for o in window if o.deadline <= forced_lim and ready(o, g, chosen)]
        while forced:
            for o in forced:
                take(o); room -= o.cost
            forced = [o for o in window if o.deadline <= forced_lim and ready(o, g, chosen)]
        def take_hard(o):
            if o.gap is not None or o in chosen: return
            assert o.after <= g, ("hard deadline before producer", o.text, o.after, g)
            for d, _ in o.deps: take_hard(d)
            chosen.append(o); pend.remove(o)
            if o in window: window.remove(o)
        for o in [o for o in window if o.hard <= g]:
            if o not in chosen:
                k = len(chosen); take_hard(o); room -= sum(x.cost for x in chosen[k:])
        while room > 0:
            c = nonsalu()
            if not c: break
            pick = None
            first = c[0]
            if room >= 8 and not chosen:
                if first.cost >= 8: pick = first
                else:
                    chosen.append(first)
                    part = [o for o in window if o is not first and o.kind != 'salu' and o.cost == 4 and ready(o, g, chosen)]
                    chosen.pop()
                    if part: pick = first
                    else:
                        big = [o for o in c if o.cost >= 8]
                        pick = big[0] if big else first
            else:
                fit = [o for o in c if o.cost <= room]
                if not fit: break
                pick = fit[0]
            take(pick); room -= pick.cost
            if pick.kind in ('store', 'barrier'):
                fit = [o for o in nonsalu() if o.kind == 'valu']
                if fit: take(fit[0])
        if g >= 0 and not last:
            used = sum(o.cost for o in chosen)
            gr = [o for o in nonsalu(True) if o.target <= g]
            if any(o.kind == 'grp' for o in chosen): gr = []
            hasg = bool(gr) or any(o.kind == 'grp' for o in chosen)
            if hasg:
                used = sum(o.cost for o in chosen if o.kind != 'grp')
                while used < 20:
                    c = [o for o in nonsalu() if o.cost <= 24 - used]
                    if not c: break
                    w = [o for o in c if o.kind == 'ldsw']
                    o = (w or c)[0]; take(o); used += o.cost
                if gr: take(gr[0])
            else:
                while used < maxover:
                    c = [o for o in nonsalu() if o.target < g - late]
                    if not c: break
                    take(c[0]); used += c[0].cost
        def cls(o): return 0 if (o.kind == 'salu' or 'memtime' in o.text) else (1 if o.kind == 'barrier' else (2 if o.kind in VM + LG else (4 if o.kind == 'grp' else 3)))
        seq = []
        rest = list(chosen)
        while rest:
            cand = [o for o in rest if all((d not in rest) for d, _ in o.deps)]
            cand.sort(key=lambda o: cls(o))
            seq.append(cand[0]); rest.remove(cand[0])
        nv = nl = None
        def merge(a, b): return b if a is None else (a if b is None else min(a, b))
        for o in seq + ([nxt] if nxt else []):
            a, b = st.needs(o); nl = merge(nl, b)
            if not st.queue: nv = merge(nv, a)
        if st.queue and g >= st.drain_gap and g % 4 == 0: st.pump_one()
        if nv is not None or nl is not None:
            st.wait(nv, nl); shadow_used = True
        if not shadow_used and not any(o.kind == 'salu' for o in seq):
            s = [o for o in window if o.kind == 'salu' and ready(o, g, [])]
            if s:
                o = s[0]; pend.remove(o); window.remove(o); st.emit(o)
        for o in seq: st.emit(o)
        if last:
            gg = g
            while pend:
                gg += 1; st.cur_gap = gg
                c = [o for o in pend if ready(o, gg, [])]
                used = 0
                while c and used < 16:
                    o = c[0]; pend.remove(o); st.emit(o); used += max(o.cost, 1)
                    c = [o for o in pend if ready(o, gg, [])]
                assert gg < n + 10000, pend[:5]
    for o in fillers:
        assert o.after <= o.gap <= o.hard, (o.text, o.after, o.gap, o.hard)
    return st

def fix_hazards(ops):
    out = []
    def dist_back(pred, maxd):
        d = 0
        for o in reversed(out):
            if pred(o): return d
            d += o.states if hasattr(o, 'states') else 1
            if d >= maxd: return None
        return None
    nn = 0
    for op in ops:
        need = 0
        def req(pred, n):
            nonlocal need
            d = dist_back(pred, n)
            if d is not None: need = max(need, n - d)
        R = op.reads | op.creads; W = op.writes
        isv = op.kind in VAL
        if op.kind == 'mfma':
            req(lambda o: o.kind in VAL and (o.writes & R), 2)
            req(lambda o: o.kind == 'mfma' and (o.writes & op.reads), 8)
            req(lambda o: o.kind == 'mfma' and (o.writes & op.creads) and o.writes != op.creads, 6)
        if isv or op.kind in VM + LG:
            req(lambda o: o.kind == 'mfma' and (o.writes & (R | W)), 8)
        if isv:
            req(lambda o: o.kind == 'mfma' and (o.creads & W), 3)
            req(lambda o: o.kind == 'trans' and (o.writes & R), 1)
            req(lambda o: o.kind == 'store' and (o.reads & W), 2)
            req(lambda o: o.kind in VAL and any(x[0] == 's' or x == 'vcc' for x in (o.writes & R)), 2)
        if op.kind in ('ldsr', 'vload'):
            req(lambda o: o.kind == 'store' and (o.reads & W), 1)
        if op.kind in VM + LG:
            req(lambda o: o.kind == 'trans' and (o.writes & R), 1)
        if op.kind == 'perm':
            req(lambda o: o.kind in VAL and (o.writes & R), 2)
        if op.kind == 'dma':
            req(lambda o: o.kind == 'salu' and 'm0' in o.writes, 1)
        if op.kind in VM:
            req(lambda o: o.kind in VAL and any(x[0] == 's' for x in (o.writes & R)), 5)
        if op.kind == 'salu':
            req(lambda o: o.kind in VAL and (o.writes & R), 2)
        if need > 0:
            x = Op(f"s_nop {need-1}", 'nop'); x.states = need; out.append(x); nn += 1
        out.append(op)
    return out, nn

def estimate(ops):
    t = 0; pipe_free = 0; prev = None; shadow = False
    for o in ops:
        if o.kind == 'mfma':
            t = max(t, pipe_free); pipe_free = t + 16; t += 8; shadow = True
        elif o.kind in ('salu', 'wait'):
            if shadow: shadow = False
            else: t += 4
        elif o.kind == 'nop':
            k = 4 * o.states
            if shadow: k -= 4; shadow = False
            t += k
        else:
            shadow = False
            c = o.cost
            if o.kind == 'dma': c = 10
            if o.kind == 'pk': t = max(t, pipe_free + 12)
            if o.kind in VM + LG and prev is not None and prev.kind in VAL: c += 8
            t += c
        if o.kind not in ('salu', 'wait'): prev = o
    return t


def verify_dataflow(final_ops, all_ops):
    def sim(seq):
        last = {}; res = {}
        for o in seq:
            res[o.id] = {r: last.get(r) for r in (o.reads | o.creads | getattr(o, 'mreads', set()))}
            for w in (o.writes | getattr(o, 'mwrites', set())): last[w] = o.id
        return res
    a = sim(sorted(all_ops, key=lambda o: (o.ref, o.id)))
    b = sim([o for o in final_ops if hasattr(o, 'ref')])
    byid = {o.id: o for o in all_ops}
    bad = 0
    for i in a:
        if a[i] != b[i]:
            for r in a[i]:
                if a[i][r] != b[i][r]:
                    bad += 1
                    if bad < 12: print("DATAFLOW", byid[i].text, "gap", byid[i].gap, "reg", r, "expected", byid.get(a[i][r]), "got", byid.get(b[i][r]))
    return bad

def verify_lds_protocol(final_ops):
    vm = []; lg = []
    state = {}
    lastw = {}; readers = {}
    bad = 0
    allm = []
    for o in final_ops:
        if o.kind == 'wait':
            m = re.search(r"vmcnt\((\d+)\)", o.text)
            if m:
                n = int(m.group(1))
                while len(vm) > n: state[vm.pop(0).id] = 1
            m = re.search(r"lgkmcnt\((\d+)\)", o.text)
            if m:
                n = int(m.group(1))
                while len(lg) > n: state[lg.pop(0).id] = 1
        elif o.kind == 'barrier':
            for k in state:
                if state[k] == 1: state[k] = 2
        if o.kind in VM + LG:
            for r in getattr(o, 'mreads', set()):
                for w in lastw.get(r, []):
                    if w.kind == 'dma':
                        need = 2 if r[0] == 'R' else 1
                        if state[w.id] < need: bad += 1; print("LDS RAW", o.text, o.gap, r)
                readers.setdefault(r, []).append(o)
            for r in getattr(o, 'mwrites', set()):
                if o.kind == 'dma':
                    need = 2 if r[0] == 'R' else 1
                    for x in readers.get(r, []) + [w for w in lastw.get(r, []) if w.kind == 'ldsw']:
                        if state[x.id] < need: bad += 1; print("LDS WAR", o.text, o.gap, r, x.text)
                else:
                    for w in lastw.get(r, []):
                        if w.kind == 'dma' and state[w.id] < 1: bad += 1; print("LDS WAW", o.text, o.gap, r)
                readers[r] = []; lastw[r] = [o]
            state[o.id] = 0
            (vm if o.kind in VM else lg).append(o)
    return bad
```

```python
import sys, math, struct, subprocess, re, os, tempfile
from sched import *

def f2u(x): return struct.unpack('<I', struct.pack('<f', x))[0]
NAME = "standalone__gqa_softmax__near_ridge"

def insn_sizes(lines):
    src = '.amdgcn_target "amdgcn-amd-amdhsa--gfx950"\n.text\n' + "\n".join(lines) + "\n"
    d = tempfile.mkdtemp()
    open(d + "/a.s", "w").write(src)
    subprocess.run(["clang", "-x", "assembler", "-target", "amdgcn-amd-amdhsa", "-mcpu=gfx950", "-c", d + "/a.s", "-o", d + "/a.o"], check=True)
    out = subprocess.run(["llvm-objdump", "-d", "--mcpu=gfx950", d + "/a.o"], capture_output=True, text=True).stdout
    sz = [4 * len(m.group(1).split()) for m in re.finditer(r"// [0-9A-F]{12}: ([0-9A-F ]+)", out)]
    assert len(sz) == len(lines), (len(sz), len(lines))
    return sz

class Cfg:
    nq = 6
    nslot = 4
    ldfl = "nt"
    stfl = ""
    timing = False
    head = ""
    tail = ""
    depth = 5
    jitk = 12; jitv = 12
    cpf = 0
    cpfl = ""
    espan = 16
    spread = 0
    cprep = 0
    pads = 1; pad0 = 0; pad1 = 15
    tstamp = 0
    cpos = 0
    vspill = False
    def __init__(self, **kw):
        for k, v in kw.items(): setattr(self, k, v)

def build(cfg):
    nq = cfg.nq; NB = 12 // nq; NS = cfg.nslot
    O = lambda qt, dt: (qt * 8 + dt) * 4
    SB = nq * 32
    S = lambda u: SB + (u % 3) * 8
    M = SB + 24
    MC = lambda qt, M0=M: M0 + qt
    M += nq
    KA = [M, M + 1]; M += 2
    VA = [M + i for i in range(4)]; M += 4
    QA = [M, M + 1]; M += 2
    VOFF = M; M += 1
    OWR = M; ORD = M + 1; OOFF = M + 2; M += 3
    TM = [M, M + 1]; M += 2
    M = (M + 1) // 2 * 2
    TE = [M, M + 2]
    TC = M + 1; JUNK = M + 3; M += 4
    CPA = 7
    M = (M + 3) // 4 * 4
    NRB = min(4, (256 - M) // 4)
    RB = lambda i: M + (i % NRB) * 4
    assert NRB >= 2, M
    Q = lambda qt, s: (qt * 4 + s) * 4
    KB = nq * 16
    KF = lambda buf, kt, s: KB + buf * 32 + (kt * 4 + s) * 4
    VBs = KB + 64
    VF = lambda buf, dt: VBs + buf * 32 + dt * 4
    LB = VBs + 64
    L = lambda qt: LB + qt * 4
    ONES = LB + nq * 4
    assert ONES + 4 <= 256
    KRING = 0; VRING = NS * 8192; QST = 2 * NS * 8192; QSZ = nq * 4096
    LDS = QST + 4 * QSZ
    assert LDS <= 160 * 1024
    OP = 272
    sQ = lambda b: 21 + b
    sKV = lambda b: 24 + b
    sLK, sLQ, sC, sSO, sST, sFL, sLO, sRG = 27, 28, 29, 30, 31, 32, 34, 35

    runs = []
    allq = list(range(nq))
    def parse(p):
        return [(int(x.split(':')[0]), [int(c) for c in x.split(':')[1]]) for x in p.split(',')] if p else []
    head = parse(cfg.head); tail = parse(cfg.tail)
    for b in range(NB):
        hd_ = head if b == 0 else []; tl_ = tail if b == NB - 1 else []
        ht = {t for t, _ in hd_}; tt = {t for t, _ in tl_}
        for t, qs in hd_: runs.append((b, t, qs))
        for t in range(16):
            if t not in ht and t not in tt: runs.append((b, t, allq))
        for t, qs in tl_: runs.append((b, t, qs))
    chk = sorted((b, t, q) for b, t, qs in runs for q in qs)
    assert chk == [(b, t, q) for b in range(NB) for t in range(16) for q in allq]
    units = []
    for r, (b, t, qs) in enumerate(runs):
        for qt in qs: units.append((b, t, qt, r))
    NU = len(units); NR = len(runs)
    mf = []; qk = {}; pv = {}; slot0 = {}
    def mfma(d, a, bb, c):
        dp, da = d; ap, aa = a; bp, ba = bb
        ct = "0" if c is None else rr(dp, da, 4)
        mf.append(Op(f"v_mfma_f32_16x16x32_bf16 {rr(dp,da,4)}, {rr(ap,aa,4)}, {rr(bp,ba,4)}, {ct}", 'mfma',
                     reads=rs(ap, aa, 4) | rs(bp, ba, 4), writes=rs(dp, da, 4), creads=(rs(dp, da, 4) if c else ())))
        return len(mf) - 1
    for i in range(NU + 2):
        slot0[i] = len(mf)
        if i < NU:
            b, t, qt, r = units[i]
            qk[i] = [mfma(('v', S(i) + kt * 4), ('a', KF(r % 2, kt, s)), ('a', Q(qt, s)), (s > 0) or None) for kt in range(2) for s in range(4)]
        if i >= 2:
            u = i - 2; b, t, qt, r = units[u]
            acc = any(units[x][0] == b and units[x][2] == qt for x in range(u)) or None
            l = [mfma(('a', L(qt)), ('a', ONES), ('v', S(u)), acc)]
            l += [mfma(('v', O(qt, dt)), ('a', VF(r % 2, dt)), ('v', S(u)), acc) for dt in range(8)]
            pv[u] = l
    NM = len(mf)
    slot0[NU + 2] = NM
    F = []
    REF = [(-1, 0)]
    def add(*a, **k):
        o = Op(*a, **k); o.ref = REF[0]; F.append(o); return o
    for u in range(NU):
        for i in qk[u]: mf[i].ref = (u, 3)
        for i in pv[u]: mf[i].ref = (u, 6)
    run_units = {r: [u for u in range(NU) if units[u][3] == r] for r in range(NR)}
    run_start = {r: slot0[run_units[r][0]] for r in range(NR)}
    run_start[NR] = slot0[NU]; run_start[-1] = -1

    dmas = []
    def dma_pair(srd, sbase, goff, lbase, loff, target, dep, hard):
        d = dict(target=target, dep=dep, hard=hard, srd=srd, sbase=sbase, goff=goff, lbase=lbase, loff=loff, ops=[])
        fl = (" " + cfg.ldfl) if cfg.ldfl else ""
        for h in range(2):
            d['ops'].append(Op(f"buffer_load_dwordx4 v{VOFF}, s[{srd}:{srd+3}], s{sSO} offen" + (" offset:128" if h else "") + fl + " lds", 'dma',
                               reads={f"v{VOFF}", f"s{sSO}", "m0"}))
        for h in range(2):
            if lbase == sLK: d['ops'][h].mwrites = {f"R{loff}_{h}"}
            else: d['ops'][h].mwrites = {f"P{(loff + h * 1024 + 256 * x) // 256}" for x in range(4)}
        dmas.append(d); return d

    LAT = 7
    barl = []
    def mkbar(g_):
        REF[0] = (0, 9)
        o = add("s_barrier", 'barrier', earliest=g_, target=g_ - 3, deadline=g_ + 2); barl.append(o); return o
    bar = {}
    def rbar(r):
        if r not in bar: bar[r] = mkbar(run_start[r])
        return bar[r]
    seq = lambda b, t: b * 16 + t
    first_run = {}; last_run = {}
    for r, (b, t, qs) in enumerate(runs):
        first_run.setdefault(seq(b, t), r); last_run[seq(b, t)] = r
    firstu = {}; lastu = {}
    for u, (b, t, qt, r) in enumerate(units):
        firstu.setdefault((b, qt), u); lastu[b, qt] = u
    def vfree_run(r):
        if r >= 1 and len(runs[r - 1][2]) >= 5 and not cfg.vspill and seq(*runs[r][:2]) >= NS: return r
        need = pv[run_units[r][0]][8] - LAT + 3
        x = r
        while run_start[x] < need: x += 1
        return x
    kd = {}; vd = {}; land = {}
    for sq in range(NB * 16):
        b, t = divmod(sq, 16)
        u0 = run_units[first_run[sq]][0]
        for (name, srd, ring, tab) in (('K', 8, KRING, kd), ('V', 12, VRING, vd)):
            if sq < NS:
                jit = max((qk[u0][0] - cfg.jitk) if name == 'K' else (pv[u0][1] - cfg.jitv), -1)
                near = [x for x in barl if 0 <= jit - x.earliest <= 2]
                lb = near[0] if near else mkbar(jit)
                tab[sq] = dma_pair(srd, sKV(b), t * 8192, sLK, ring + (sq % NS) * 8192, None, None, max(lb.earliest - 1, -1))
                tab[sq]['waiter'] = lb; tab[sq]['need'] = (lb.earliest, 0 if name == 'K' else 2)
            else:
                fr = last_run[sq - NS] if name == 'K' else vfree_run(last_run[sq - NS])
                need = first_run[sq] - 1
                if name == 'V' and fr >= need: need = first_run[sq]
                assert fr < need, (sq, name, fr, need)
                lb = rbar(need)
                g0 = run_start[fr]; span = run_start[fr + 1] - g0
                tab[sq] = dma_pair(srd, sKV(b), t * 8192, sLK, ring + (sq % NS) * 8192,
                                   g0 + (span * (1 if name == 'K' else 3)) // 5, rbar(fr), lb.earliest - 1)
                tab[sq]['free_bar'] = fr
            lb.need_vm += tab[sq]['ops']
            if sq >= NS: lb.deps.append((tab[sq]['ops'][1], 0))
            land[name, sq] = lb
            tab[sq]['ref'] = (u0, 0)
    qd = {}
    for b in range(NB):
        for qt in range(nq):
            for rg in range(2):
                if b == 0: tg = None; hd = max(qk[firstu[0, qt]][0] - LAT - 2, -1)
                else:
                    lo = run_start[first_run[seq(b - 1, 5)]]; hi = run_start[first_run[seq(b - 1, 13)]]
                    tg = lo + (hi - lo) * (qt * 2 + rg) // (2 * nq) + 7; hd = hi + 40
                qd[b, qt, rg] = dma_pair(4, sQ(b), qt * 4096 + rg * 2048, sLQ, qt * 4096 + rg * 2048, tg, None, hd)
                qd[b, qt, rg]['ref'] = ((run_units[first_run[seq(b - 1, 8)]][0] if b else -1), 0)
                if b == 0: qd[b, qt, rg]['need'] = (hd + 1 if firstu[0, qt] else -1, 1, qt, rg)

    qread = {}
    for b in range(NB):
        for qt in range(nq):
            u = firstu[b, qt]
            REF[0] = (lastu[b - 1, qt], 4) if b else (-1, 1)
            for s in range(4):
                aft = qk[lastu[b - 1, qt]][4 + s] if b else -1
                dl = qk[u][s] - LAT
                qread[b, qt, s] = add(f"ds_read_b128 {rr('a', Q(qt, s), 4)}, v{QA[s % 2]} offset:{qt * 4096 + (s // 2) * 1024}", 'ldsr',
                    reads={f"v{QA[s%2]}"}, writes=rs('a', Q(qt, s), 4), need_vm=qd[b, qt, 0]['ops'] + qd[b, qt, 1]['ops'],
                    deps=([qd[b, qt, 1]['ops'][1], qd[b, qt, 0]['ops'][1]] if b else ([land['K', 0]] if u == 0 else [])),
                    after=aft, earliest=(max(qk[u][0] - LAT - 1, 0 if u else -1) if b == 0 else aft), target=(dl - 8 if b == 0 else aft + 2), deadline=dl, hard=(qk[u][s] - 1 if u else -1))
                qread[b, qt, s].mreads = {f"P{(qt * 4096 + rg * 2048 + (s // 2) * 1024) // 256 + x}" for rg in range(2) for x in range(4)}
            if b == 0:
                for rg in range(2): qd[b, qt, rg]['waiter'] = qread[b, qt, 0]
    order = sorted([d for d in dmas if d['target'] is None], key=lambda d: d['need'])
    for d in order: d['target'] = -1; d['hard'] = 10**9; d['first'] = True
    rest = sorted([d for d in dmas if d not in order], key=lambda d: d['target'])
    prev = None; firstbatch = []
    for d in order + rest:
        tg = d['target']; hd = d['hard']
        REF[0] = d['ref'] + (len(F), 0)
        d['ops'][0].ref = d['ref'] + (len(F), 1); d['ops'][1].ref = d['ref'] + (len(F), 3); ref2 = d['ref'] + (len(F), 2)
        deps = [prev] if prev else []
        m = add(f"s_add_u32 m0, s{d['lbase']}, {d['loff']}", 'salu', writes={"m0"}, deps=deps, target=tg - 3, hard=hd)
        a = add(f"s_add_u32 s{sSO}, s{d['sbase']}, {d['goff']}", 'salu', reads={f"s{d['sbase']}"}, writes={f"s{sSO}"}, deps=deps, target=tg - 2, hard=hd)
        o0, o1 = d['ops']
        sl_ = 1 if d.get('urgent') else 30
        o0.deps = [(m, 1), (a, 1)] + ([(d['dep'], 0)] if d['dep'] else []); o0.target = tg; o0.earliest = tg - 8; o0.hard = hd; o0.deadline = min(hd, tg + sl_)
        m2 = add(f"s_add_u32 m0, s{d['lbase']}, {d['loff'] + 1024 - 128}", 'salu', writes={"m0"}, deps=[o0], target=tg + 1, hard=hd)
        m2.ref = ref2
        o1.deps = [(m2, 1)]; o1.target = tg + (2 if tg >= 0 else 0); o1.earliest = tg - 8; o1.hard = hd; o1.deadline = min(hd, tg + sl_ + 2)
        F.extend([o0, o1]); prev = o1
        if d.get('first'): firstbatch.append([m, a, o0, m2, o1])

    for r in range(NR):
        b, t, qs = runs[r]; sq = seq(b, t); sl = sq % NS
        u0 = run_units[r][0]
        kb = land['K', sq]; vb = land['V', sq]
        g0 = max(kb.earliest + 1, run_start[r - 1] + 1)
        kfree = qk[run_units[r - 2][-1]] if r >= 2 else None
        vfree = pv[run_units[r - 2][-1]] if r >= 2 else None
        vstart = max(vb.earliest + 1, run_start[r - 1] + 1, (vfree[1] if vfree else -1))
        spill = vfree_run(r) > r if r < NR - 3 else True
        kend = min(run_start[r] - LAT, vstart if not spill else 10**9)
        kend = max(kend, g0)
        kops = []
        REF[0] = (u0, 2)
        for kt in range(2):
            for s in range(4):
                i = kt * 4 + s
                o = add(f"ds_read_b128 {rr('a', KF(r % 2, kt, s), 4)}, v{KA[s % 2]} offset:{KRING + sl * 8192 + kt * 4096 + (s // 2) * 1024}", 'ldsr',
                        reads={f"v{KA[s%2]}"}, writes=rs('a', KF(r % 2, kt, s), 4), deps=[kb],
                        after=(kfree[i] if kfree else -1), target=(g0 + (kend - g0) * i // 8) if r else -50, deadline=qk[u0][i] - LAT, hard=(qk[u0][i] - 1 if r else -1))
                kops.append(o); o.mreads = {f"R{KRING + sl * 8192}_{s // 2}"}
        vend = (pv[u0][1] - LAT) if spill else (run_start[r] - 4)
        vend = max(vend, vstart)
        vops = []
        for dt in range(8):
            for h in range(2):
                i = dt * 2 + h
                o = add(f"ds_read_b64_tr_b16 {rr('a', VF(r % 2, dt) + 2 * h, 2)}, v{VA[dt % 4]} offset:{sl * 8192 + h * 4096 + (dt // 4) * 1024}", 'ldsr',
                        reads={f"v{VA[dt%4]}"}, writes=rs('a', VF(r % 2, dt) + 2 * h, 2), deps=[vb],
                        after=(vfree[1 + dt] if vfree else -1), target=vstart + (vend - vstart) * i // 16, deadline=pv[u0][1 + dt] - LAT, hard=pv[u0][1 + dt] - 1)
                vops.append(o); o.mreads = {f"R{VRING + sl * 8192}_{dt // 4}"}
        if last_run[sq] == r and sq + NS < NB * 16:
            fb = bar[kd[sq + NS]['free_bar']]; fb.deps += [(o, 3) for o in kops]; fb.need_lgkm += kops
            fb = bar[vd[sq + NS]['free_bar']]; fb.deps += [(o, 3) for o in vops]; fb.need_lgkm += vops

    lastf = {}
    for u, (b, t, qt, r) in enumerate(units):
        sb = S(u); st0 = slot0[u + 1]; hard = pv[u][0] - 1
        mdep = []
        REF[0] = (u, 5)
        if u == firstu[b, qt]:
            e0 = qk[u][7] + 4; a0 = qk[u][7]
            t0, t1 = TM
            ch = []
            def chain(text, kind, reads, writes, mg=0, extra=()):
                o = add(text, kind, reads=reads, writes=writes, deps=([(ch[-1], mg)] if ch else list(extra)) + ([] if not ch else list(extra)), after=a0, earliest=e0, target=e0 - 6 + len(ch) // 2, hard=hard)
                ch.append(o)
            v = lambda x: f"v{x}"
            chain(f"v_max3_f32 v{t0}, v{sb}, v{sb+1}, v{sb+2}", 'valu', {v(sb), v(sb+1), v(sb+2)}, {v(t0)}, extra=([lastf['max']] if 'max' in lastf else []))
            chain(f"v_max3_f32 v{t1}, v{sb+3}, v{sb+4}, v{sb+5}", 'valu', {v(sb+3), v(sb+4), v(sb+5)}, {v(t1)})
            chain(f"v_max3_f32 v{t0}, v{t0}, v{sb+6}, v{sb+7}", 'valu', {v(t0), v(sb+6), v(sb+7)}, {v(t0)})
            chain(f"v_max_f32 v{t0}, v{t0}, v{t1}", 'valu', {v(t0), v(t1)}, {v(t0)})
            chain(f"v_mov_b32 v{t1}, v{t0}", 'valu', {v(t0)}, {v(t1)})
            chain(f"v_permlane32_swap_b32 v{t0}, v{t1}", 'perm', {v(t0), v(t1)}, {v(t0), v(t1)}, mg=2)
            chain(f"v_max_f32 v{t0}, v{t0}, v{t1}", 'valu', {v(t0), v(t1)}, {v(t0)}, mg=1)
            chain(f"v_mov_b32 v{t1}, v{t0}", 'valu', {v(t0)}, {v(t1)})
            chain(f"v_permlane16_swap_b32 v{t0}, v{t1}", 'perm', {v(t0), v(t1)}, {v(t0), v(t1)}, mg=2)
            chain(f"v_max_f32 v{t0}, v{t0}, v{t1}", 'valu', {v(t0), v(t1)}, {v(t0)}, mg=1)
            chain(f"v_mul_f32 v{MC(qt)}, s{sC+0}, v{t0}".replace(f"s{sC}", f"s{sC}"), 'valu', {v(t0)}, {v(MC(qt))}, extra=lastf.get(qt, []))
            mdep = [ch[-1]]; lastf['max'] = ch[-1]
        fs = []; es = []
        for k in range(8):
            a0 = qk[u][3 if k < 4 else 7]
            f = add(f"v_fma_f32 v{sb+k}, v{sb+k}, s{sC}, -v{MC(qt)}", 'valu', reads={f"v{sb+k}", f"v{MC(qt)}"}, writes={f"v{sb+k}"},
                    deps=mdep, after=a0, earliest=a0 + 4, target=st0 + 2 * k - 2, hard=hard)
            e = add(f"v_exp_f32 v{sb+k}, v{sb+k}", 'trans', reads={f"v{sb+k}"}, writes={f"v{sb+k}"}, deps=[f], after=a0, target=st0 + 2 * k, hard=hard,
                    deadline=hard - 2 - (7 - k))
            fs.append(f); es.append(e)
        lastf[qt] = fs
        pc = None
        for j in range(4):
            c = add(f"v_cvt_pk_bf16_f32 v{sb+j}, v{sb+2*j}, v{sb+2*j+1}", 'valu', reads={f"v{sb+2*j}", f"v{sb+2*j+1}"}, writes={f"v{sb+j}"},
                    deps=[(es[2 * j], 1), (es[2 * j + 1], 1)] + ([pc] if pc else []), after=qk[u][3], target=st0 + 4 * j + 4, deadline=hard - 1, hard=hard)
            pc = c

    eorder = sorted([(lastu[k], k) for k in lastu])
    prev_dsr = {}; prev_st = {}; prev_last_st = None; prev_mul = {}; prev_chk = None
    rbc = 0
    SUBS = []
    for n_e, (u, (b, qt)) in enumerate(eorder):
        nxt = pv[firstu[b + 1, qt]] if b + 1 < NB else None
        NOB = QSZ // (16 * OP); k_e = n_e % nq
        te = TE[n_e % 2]; obi = k_e % NOB; ob = obi * 16 * OP
        base = pv[u][0]
        REF[0] = (u + 2, 7)
        oreg = {f"P{x}" for x in range(ob // 256, (ob + 16 * OP + 255) // 256)}
        span = (nxt[0] - base - 12) if nxt else 17
        span = min(span, cfg.espan)
        hd = lambda i: (nxt[i] - 1) if nxt else 10**9
        rd = add(f"v_accvgpr_read_b32 v{te}, a{L(qt)}", 'valu', reads={f"a{L(qt)}"}, writes={f"v{te}"}, after=base, earliest=base + 4, target=base + 2, hard=hd(0),
                 deps=prev_mul.get(n_e % 2, []))
        c1 = add(f"v_subrev_u32 v{TC}, s{sLO}, v{te}", 'valu', reads={f"v{te}"}, writes={f"v{TC}"}, deps=[rd] + ([prev_chk] if prev_chk else []), target=base + 3, hard=hd(1))
        c2 = add(f"v_cmp_lt_u32 vcc, s{sRG}, v{TC}", 'valu', reads={f"v{TC}"}, writes={"vcc"}, deps=[c1], target=base + 4, hard=hd(1))
        c3 = add(f"s_or_b64 s[{sFL}:{sFL+1}], s[{sFL}:{sFL+1}], vcc", 'salu', reads={"vcc"}, writes={f"s{sFL}"}, deps=[(c2, 2)], target=base + 6, hard=hd(1))
        prev_chk = c3
        rc = add(f"v_rcp_f32 v{te}, v{te}", 'trans', reads={f"v{te}"}, writes={f"v{te}"}, deps=[c1], target=base + 4, hard=hd(1))
        dsw = []; muls = []
        qdeps = [qread[b + 1, q2, s] for q2 in range(nq) for s in range(4) if (b + 1, q2, s) in qread and (q2 * 4096 < ob + 16 * OP and (q2 + 1) * 4096 > ob)]
        for dp in range(4):
            a0 = pv[u][2 + 2 * dp]; tg = base + 8 + span * dp // 4
            subs = []
            for dt in (2 * dp, 2 * dp + 1):
                o = O(qt, dt)
                for i in (0, 2):
                    subs.append(Op(f"v_pk_mul_f32 v[{o+i}:{o+i+1}], v[{o+i}:{o+i+1}], v[{te}:{te+1}] op_sel_hi:[1,0]", 'pk', reads={f"v{o+i}", f"v{o+i+1}", f"v{te}"}, writes={f"v{o+i}", f"v{o+i+1}"}))
            for dt in (2 * dp, 2 * dp + 1):
                o = O(qt, dt)
                subs.append(Op(f"v_cvt_pk_bf16_f32 v{o}, v{o}, v{o+1}", 'valu', reads={f"v{o}", f"v{o+1}"}, writes={f"v{o}"}))
                subs.append(Op(f"v_cvt_pk_bf16_f32 v{o+1}, v{o+2}, v{o+3}", 'valu', reads={f"v{o+2}", f"v{o+3}"}, writes={f"v{o+1}"}))
            gop = Op("grp", 'grp', cost=32, deps=[(rc, 1)] + muls[-1:], after=a0, earliest=a0 + 3, target=tg, hard=hd(1 + 2 * dp)); gop.subs = subs; F.append(gop)
            for x in subs: x.ref = REF[0]; SUBS.append(x)
            muls.append(gop)
            for k, dt in enumerate((2 * dp, 2 * dp + 1)):
                o = O(qt, dt)
                w = add(f"ds_write_b64 v{OWR}, v[{o}:{o+1}] offset:{ob + dt * 32}", 'ldsw', reads={f"v{OWR}", f"v{o}", f"v{o+1}"}, deps=[(gop, 1)] + prev_dsr.get(obi, []) + qdeps,
                        target=tg + (-1 if k == 0 else span // 4), deadline=hd(1 + dt) - 2, hard=hd(1 + dt))
                dsw.append(w); w.mwrites = oreg | {f"XO{obi}_{dt}"}
        prev_mul[n_e % 2] = muls
        tg = base + 10 + span
        stp = 1
        if nxt and cfg.spread:
            stp = cfg.spread; tg0_ = tg if k_e == 0 else tg0_
            tg = max(tg, tg0_ + k_e * 4 * stp)
        sa = add(f"s_add_u32 s{sST}, s{sQ(b)}, {qt * 4096}", 'salu', writes={f"s{sST}"}, deps=([prev_last_st] if prev_last_st else []), target=tg)
        dsr = []
        fl = (" " + cfg.stfl) if cfg.stfl else ""
        for i in range(4):
            rb = RB(rbc); key = rbc % NRB; rbc += 1
            x = add(f"ds_read_b128 {rr('v', rb, 4)}, v{ORD} offset:{ob + i * 4 * OP}", 'ldsr', reads={f"v{ORD}"}, writes=rs('v', rb, 4),
                    deps=dsw + ([(prev_st[key], 1)] if key in prev_st else []), earliest=(tg + i * stp if stp > 1 else -1), target=tg + i * stp, deadline=tg + i * stp + 20)
            y = add(f"buffer_store_dwordx4 {rr('v', rb, 4)}, v{OOFF}, s[16:19], s{sST} offen offset:{i * 1024}{fl}", 'store', reads=rs('v', rb, 4) | {f"v{OOFF}", f"s{sST}"},
                    deps=[(x, LAT), (sa, 1)] + ([prev_last_st] if prev_last_st else []), target=tg + i * stp + LAT, deadline=tg + i * stp + LAT + 20)
            prev_st[key] = y; prev_last_st = y; dsr.append(x); x.mreads = oreg | {f"XO{obi}_{dt}" for dt in range(8)}
        prev_dsr[obi] = dsr
        if b + 2 < NB:
            for q2 in range(nq):
                for rg in range(2):
                    o0 = qd[b + 2, q2, rg]['ops'][0]; o0.deps += [(x, 0) for x in dsr]; o0.need_lgkm += dsr

    if cfg.cpf and cfg.cprep:
        REF[0] = (0, 9)
        for r in range(cfg.cprep, NR, cfg.cprep):
            add(f"buffer_load_dword v{JUNK}, v{OOFF}, s[52:55], s51 offen", 'dma', earliest=run_start[r] + 9, target=run_start[r] + 9, deadline=run_start[r] + 30)
    stamps = []
    if cfg.timing:
        want = [r for r in range(NR) if (r < len(head) + 3 or runs[r][1] in (0, 1, 2, 8, 15) or r >= NR - len(tail) - 1)]
        if cfg.tstamp: want = list(range(NR))[-19:]
        want = want[:19]
        for i, r in enumerate(want):
            REF[0] = (0, 9)
            add(f"s_memtime s[{56 + 2 * i}:{57 + 2 * i}]", 'salu', earliest=run_start[r], target=run_start[r] - 5, deadline=run_start[r] + 1)
            stamps.append(r)
    if cfg.timing:
        REF[0] = (0, 9)
        add("s_memtime s[96:97]", 'valu', deps=[land['K', 0]], target=-60, hard=-1)
        add("s_memtime s[94:95]", 'valu', deps=[qread[0, units[0][2], 0]], target=-10, hard=-1)
    st = Stream()
    st.queue = list(firstbatch); st.depth = 2 * cfg.depth; st.drain_gap = max(qd[0, qt, 0]['need'][0] for qt in range(nq)) + 1
    pumped = {o.id for grp_ in firstbatch for o in grp_}
    st.topup()
    mark = Op("@SETUP2@", 'nop'); mark.states = 40; st.out.append(mark)
    schedule(st, mf, [o for o in F if o.id not in pumped])
    ops, nn = fix_hazards(st.out)
    est = estimate(ops)
    nb1 = verify_dataflow(ops, mf + [o for o in F if o.kind != 'grp'] + SUBS); nb2 = verify_lds_protocol(ops)
    assert nb1 == 0 and nb2 == 0, (nb1, nb2)
    mi = [i for i, o in enumerate(ops) if o.text == "@SETUP2@"][0]
    pre_ops = ops[:mi + 1]; main = ops[mi + 1:]
    sz = insn_sizes([o.text for o in main])
    lines = []; pos = 0; page = cfg.pad0; npad = 0; padpages = []
    lastpad = min(cfg.pad1, (sum(sz) + 256) // 4096)
    for i, o in enumerate(main):
        if cfg.pads and page <= lastpad and pos >= page * 4096:
            good = i > 0 and main[i - 1].kind == 'mfma' and o.kind not in ('salu', 'wait')
            if good or pos + sz[i] > page * 4096 + 56:
                lines.append(f"@PAD{npad}@"); npad += 1; pos += 4; page += 1
        lines.append("    " + o.text); pos += sz[i]
    mtxt = "\n".join(lines)
    for k in range(npad):
        mtxt = mtxt.replace(f"@PAD{k}@", f"L_pad{k}:\n    s_cbranch_execz " + (f"L_pad{k+4}" if k + 4 < npad else "L_padend"))
    warm = ""
    if npad:
        warm = "    s_mov_b64 exec, 0\n" + "".join(f"    s_cmp_eq_u32 s20, {w}\n    s_cbranch_scc1 L_pad{w}\n" for w in range(min(3, npad))) + \
               ("    s_branch L_pad3\n" if npad > 3 else "") + "L_padend:\n    s_mov_b64 exec, -1\n"
    body = "\n".join("    " + o.text for o in pre_ops) + "\n" + warm + "    s_branch L_main\n.p2align 12\nL_main:\n" + mtxt
    codesz = pos

    c = math.log2(math.e) / math.sqrt(128.0)
    LO = f2u(2.0 ** -20); HI = f2u(2.0 ** 20)
    p = []
    A = p.append
    A("s_cmp_ge_u32 s2, 256"); A("s_cbranch_scc1 L_exit")
    A("s_load_dwordx4 s[36:39], s[0:1], 0"); A("s_load_dwordx4 s[40:43], s[0:1], 16")
    if cfg.timing:
        p[2:2] = ["s_memtime s[46:47]", "s_memrealtime s[48:49]", "s_waitcnt lgkmcnt(0)", "s_mov_b32 s100, s46", "s_mov_b32 s101, s48"]
    if cfg.cpf:
        pp = ["s_getpc_b64 s[52:53]", "s_lshr_b32 s50, s2, 3", "s_mov_b32 s54, CODE_BYTES", "s_mov_b32 s55, 0x20000", "s_and_b32 s53, s53, 0xffff",
              "s_lshl_b32 s50, s50, 12", f"v_lshlrev_b32 v{CPA}, 4, v0", f"buffer_load_dword v{JUNK}, v{CPA}, s[52:55], s50 offen"]
        p[0:0] = pp
    A("v_lshrrev_b32 v1, 6, v0"); A("v_and_b32 v0, 63, v0"); A("v_readfirstlane_b32 s20, v1")
    A("v_lshrrev_b32 v1, 3, v0"); A("v_and_b32 v2, 6, v1"); A("v_and_b32 v3, 7, v0"); A("v_xor_b32 v2, v2, v3")
    A("v_lshlrev_b32 v2, 4, v2"); A(f"v_lshl_add_u32 v{VOFF}, v1, 8, v2")
    p2 = []
    A("s_and_b32 s44, s2, 7"); A("s_lshr_b32 s45, s2, 3")
    A(f"s_lshl_b32 s{sLK}, s20, 11")
    A(f"s_mul_i32 s{sLQ}, s20, {QSZ}")
    A(f"s_mov_b32 s49, s{sLQ}")
    for b in range(NB):
        A = p.append if b == 0 else p2.append
        if NB == 2:
            A("s_lshr_b32 s46, s45, 1"); A(f"s_add_u32 s46, s46, {b*16}"); A("s_and_b32 s47, s45, 1")
        else:
            A(f"s_add_u32 s47, s45, {b*32}"); A("s_mul_i32 s46, s47, 0x5556"); A("s_lshr_b32 s46, s46, 16"); A("s_mul_i32 s48, s46, 3"); A("s_sub_u32 s47, s47, s48")
        A("s_lshl_b32 s46, s46, 3"); A("s_add_u32 s46, s46, s44")
        A(f"s_lshl_b32 s{sKV(b)}, s46, 17"); A(f"s_add_u32 s{sKV(b)}, s{sKV(b)}, s{sLK}")
        A(f"s_mul_i32 s46, s46, {768*256}"); A(f"s_mul_i32 s47, s47, {4*QSZ}"); A("s_add_u32 s46, s46, s47")
        A(f"s_add_u32 s{sQ(b)}, s46, s49")
    A = p.append
    A(f"s_add_u32 s{sLQ}, s{sLQ}, {QST}")
    A("s_mov_b32 s6, 0x3000000"); A("s_mov_b32 s7, 0x20000"); A("s_mov_b32 s10, 0x2000000"); A("s_mov_b32 s11, 0x20000")
    A("s_mov_b32 s14, 0x2000000"); A("s_mov_b32 s15, 0x20000"); A("s_mov_b32 s18, 0x3000000"); A("s_mov_b32 s19, 0x20000")
    A = p2.append
    if cfg.cpf: A("s_lshl_b32 s51, s20, 10"); A("s_add_u32 s51, s51, s50")
    A(f"s_mov_b32 s{sC}, 0x{f2u(c):08x}"); A(f"s_mov_b32 s{sLO}, 0x{LO:08x}"); A(f"s_mov_b32 s{sRG}, 0x{HI-LO:08x}"); A(f"s_mov_b64 s[{sFL}:{sFL+1}], 0")
    A("v_and_b32 v1, 15, v0"); A("v_lshrrev_b32 v2, 4, v0")
    A("v_lshrrev_b32 v3, 3, v1"); A("v_lshlrev_b32 v3, 11, v3"); A("v_and_b32 v4, 7, v1"); A("v_lshl_add_u32 v3, v4, 7, v3")
    A("v_and_b32 v4, 6, v1"); A("v_xor_b32 v4, v4, v2"); A(f"v_lshl_add_u32 v{KA[0]}, v4, 4, v3"); A(f"v_xor_b32 v{KA[1]}, 64, v{KA[0]}")
    A(f"v_add_u32 v{QA[0]}, s{sLQ}, v{KA[0]}"); A(f"v_add_u32 v{QA[1]}, s{sLQ}, v{KA[1]}")
    A(f"v_mul_u32_u24 v3, {OP}, v1"); A("v_lshl_add_u32 v3, v2, 3, v3"); A(f"v_add_u32 v{OWR}, s{sLQ}, v3")
    A(f"v_mul_u32_u24 v3, {OP}, v2"); A("v_lshl_add_u32 v3, v1, 4, v3"); A(f"v_add_u32 v{ORD}, s{sLQ}, v3")
    A(f"v_lshlrev_b32 v{OOFF}, 4, v0")
    A("v_lshrrev_b32 v1, 2, v0"); A("v_and_b32 v2, 3, v0")
    A("v_lshrrev_b32 v3, 3, v1"); A("v_lshlrev_b32 v3, 11, v3"); A("v_and_b32 v4, 7, v1"); A("v_lshl_add_u32 v3, v4, 7, v3")
    A("v_and_b32 v4, 6, v1"); A("v_lshrrev_b32 v5, 1, v2"); A("v_xor_b32 v4, v4, v5"); A("v_lshl_add_u32 v3, v4, 4, v3")
    A("v_and_b32 v4, 1, v2"); A("v_lshl_add_u32 v3, v4, 3, v3"); A(f"v_add_u32 v{VA[0]}, {VRING}, v3")
    for i in range(1, 4): A(f"v_xor_b32 v{VA[i]}, {32*i}, v{VA[0]}")
    A("v_cmp_eq_u32 vcc, 0, v2"); A("v_mov_b32 v4, 0x3f803f80"); A("s_nop 1"); A("v_cndmask_b32 v4, 0, v4, vcc"); A("s_nop 0")
    for i in range(4): A(f"v_accvgpr_write_b32 a{ONES+i}, v4")
    A = p.append
    A("s_waitcnt lgkmcnt(0)")
    if cfg.timing: A("s_memtime s[98:99]")
    A("s_mov_b32 s4, s36"); A("s_mov_b32 s5, s37"); A("s_mov_b32 s8, s38"); A("s_mov_b32 s9, s39")
    A("s_mov_b32 s12, s40"); A("s_mov_b32 s13, s41"); A("s_mov_b32 s16, s42"); A("s_mov_b32 s17, s43")
    pro = "\n".join("    " + x for x in p)
    body = body.replace("    @SETUP2@", "\n".join("    " + x for x in p2))
    e = []
    if cfg.timing:
        e += ["s_memtime s[40:41]", "s_waitcnt vmcnt(0) lgkmcnt(0)", "s_memtime s[42:43]", "s_memrealtime s[44:45]", "s_load_dwordx4 s[48:51], s[0:1], 32", "s_waitcnt lgkmcnt(0)",
              "s_mov_b32 s36, s50", "s_mov_b32 s37, s51", "s_mov_b32 s38, 0x100000", "s_mov_b32 s39, 0x20000", "s_sub_u32 s40, s40, s100", "s_sub_u32 s42, s42, s100",
              "v_mov_b32 v0, s40", "v_mov_b32 v1, s42", "v_mov_b32 v2, s101", "v_mov_b32 v3, s44"]
        for i in range(24):
            if i < len(stamps): e += [f"s_sub_u32 s46, s{56+2*i}, s100", f"v_mov_b32 v{4+i}, s46"]
            elif i >= 21: e += [f"s_sub_u32 s46, s{98 - 2 * (i - 21)}, s100", f"v_mov_b32 v{4+i}, s46"]
            else: e += [f"v_mov_b32 v{4+i}, 0"]
        e += ["s_lshl_b32 s46, s2, 2", "s_add_u32 s46, s46, s20", "s_lshl_b32 s46, s46, 7", "v_mov_b32 v40, s46", "s_mov_b64 exec, 1"]
        for i in range(7): e += [f"buffer_store_dwordx4 v[{4*i}:{4*i+3}], v40, s[36:39], 0 offen offset:{16*i}"]
        e += ["s_mov_b32 s52, s48", "s_mov_b32 s53, s49", "s_mov_b32 s54, 64", "s_mov_b32 s55, 0x20000", "v_sub_u32 v2, v3, v2"]
        for i in range(4): e += [f"buffer_store_dwordx4 v[{4*i}:{4*i+3}], v40, s[52:55], 0 offen offset:{16*i}"]
        print("stamps at runs", stamps)
    epi = "\n".join("    " + x for x in e)
    txt = f"""; GQA attention forward: B=32 Hq=32 Hkv=8 Sq=192 Sk=512 D=128, bf16 (generated by my own scheduler script)
; @launch grid=(256,1,1) block=(256,1,1) lds={LDS}
.amdgcn_target "amdgcn-amd-amdhsa--gfx950"
.text
.globl {NAME}_kernel
.p2align 8
.type {NAME}_kernel,@function
{NAME}_kernel:
.set CODE_BYTES, L_exit - {NAME}_kernel - 64
{pro}
{body}
{epi}
L_exit:
    s_endpgm
.section .rodata,"a"
.p2align 6
.amdhsa_kernel {NAME}_kernel
  .amdhsa_next_free_vgpr 512
  .amdhsa_next_free_sgpr 102
  .amdhsa_accum_offset 256
  .amdhsa_group_segment_fixed_size 0
  .amdhsa_kernarg_size 48
  .amdhsa_user_sgpr_count 2
  .amdhsa_user_sgpr_kernarg_segment_ptr 1
  .amdhsa_system_sgpr_workgroup_id_x 1
.end_amdhsa_kernel
"""
    return txt, dict(n=len(ops), nops=nn, est=est, mfma=NM, code=codesz, npad=npad)

if __name__ == "__main__":
    out = sys.argv[1]
    kw = {}
    for a in sys.argv[2:]:
        k, v = a.split("="); v = v.replace("_", " ")
        try: v = int(v)
        except ValueError: pass
        kw[k] = v
    txt, info = build(Cfg(**kw))
    open(out, "w").write(txt)
    print(out, info, len(txt))
```
